```python
import torch

def _softmax(x, axis=-1):
    return torch.softmax(x, dim=axis)
def _gelu(x):
    return torch.nn.functional.gelu(x, approximate="tanh")
def _silu(x):
    return torch.nn.functional.silu(x)
def _sigmoid(x):
    return torch.sigmoid(x)
def _layernorm(x, axis=-1, eps=1e-5):
    m = x.mean(dim=axis, keepdim=True)
    v = x.var(dim=axis, keepdim=True, unbiased=False)
    return (x - m) / torch.sqrt(v + eps)
def _scatter_add(tgt, idx, src, axis=0):
    return tgt.clone().index_add_(axis, idx, src)
def _segment_sum(src, seg, n):
    out = torch.zeros((n,) + src.shape[1:], dtype=src.dtype)
    return out.index_add_(0, seg, src)
def _pad(x, pw):
    flat = tuple(v for pair in reversed(pw) for v in pair)
    return torch.nn.functional.pad(x, flat)

kernel_name = 'standalone__softmax_full_bidir__sampling'

def setup_inputs():

    _w = (lambda a: (lambda t: t.to(torch.bfloat16) if t.is_floating_point() else t)(torch.as_tensor(a)))
    B, H, Sq, Skv, Dh = 8, 32, 1, 4096, 128
    return {
        "q": _w((lambda *s: torch.randn(*s, dtype=torch.bfloat16) * 0.8)(B, H, Sq, Dh)),
        "k": _w((lambda *s: torch.randn(*s, dtype=torch.bfloat16) * 0.8)(B, H, Skv, Dh)),
        "v": _w((lambda *s: torch.randn(*s, dtype=torch.bfloat16) * 0.05)(B, H, Skv, Dh)),
    }

def reference(q, k, v):
    scale = q.shape[-1] ** -0.5
    scores = torch.einsum('bhqd,bhkd->bhqk', q, k) * scale
    attn = _softmax(scores, axis=-1)
    return torch.einsum('bhqk,bhkd->bhqd', attn, v)
```

```python
import sys, math, struct

NAME = "standalone__softmax_full_bidir__sampling"

HEADER = """; Kernarg layout for this problem (48 bytes, ptrs only, base s[0:1]):
"""

def f2u(x):
    return struct.unpack("<I", struct.pack("<f", x))[0]

def gen(NW=8, T=8, G=4, DEPTH=2, kflags="nt", vflags="nt", compute=True, stagger=0, lds_pad=0, wave_major=False):
    L = []
    e = L.append
    SKV = 4096
    keys_per_wg_iter = NW * T * 4
    iters = SKV // keys_per_wg_iter
    assert iters * keys_per_wg_iter == SKV
    assert iters % DEPTH == 0
    tile_bytes = T * 1024
    if wave_major:
        iter_stride = tile_bytes
        wave_stride = (SKV * 256) // NW
    else:
        iter_stride = NW * tile_bytes
        wave_stride = tile_bytes
    lds_bytes = max(NW * 512 + NW * 8, lds_pad)
    vOff = 1
    vQ = 4
    vM, vL, vA, vT0 = 8, 9, 10, 11
    vAcc = 12
    vTmp = 20
    vS = 28
    vK = vS + T
    vK = (vK + 3) // 4 * 4
    vV = vK + DEPTH * T * 4
    nv = vV + DEPTH * T * 4
    sK, sV, sQ, sO = 8, 12, 16, 20
    sOffK, sOffV = 24, 32
    sC, sMask, sIter, sWave = 40, 41, 42, 43
    nchunk = (T + 3) // 4
    c = (128 ** -0.5) * math.log2(math.e)

    e(HEADER + f"; @launch grid=(256,1,1) block=({NW*64},1,1) lds={lds_bytes}")
    e('.amdgcn_target "amdgcn-amd-amdhsa--gfx950"')
    e(".text")
    e(f".globl {NAME}_kernel")
    e(".p2align 8")
    e(f".type {NAME}_kernel,@function")
    e(f"{NAME}_kernel:")
    e("  s_cmp_ge_u32 s2, 256")
    e("  s_cbranch_scc1 L_end")
    e("  s_load_dwordx8 s[44:51], s[0:1], 0")
    e("  v_lshrrev_b32 v2, 6, v0")
    e("  v_and_b32 v3, 63, v0")
    e(f"  v_readfirstlane_b32 s{sWave}, v2")
    e(f"  v_lshlrev_b32 v{vOff}, 4, v3")
    e(f"  v_and_b32 v2, 15, v3")
    e(f"  v_lshlrev_b32 v2, 4, v2")
    e(f"  s_mul_i32 s3, s{sWave}, {wave_stride}")
    e(f"  v_add_u32 v{vOff}, s3, v{vOff}")
    e(f"  s_mov_b32 s{sC}, {f2u(c):#x}")
    e(f"  s_mov_b32 s{sMask}, 0xffff0000")
    e(f"  s_lshr_b32 s4, s2, 12")
    e(f"  s_lshl_b32 s5, s2, 20")
    e(f"  s_lshl_b32 s6, s2, 8")
    e(f"  s_mov_b32 s{sK+2}, 0x100000")
    e(f"  s_mov_b32 s{sK+3}, 0x20000")
    e(f"  s_mov_b32 s{sV+2}, 0x100000")
    e(f"  s_mov_b32 s{sV+3}, 0x20000")
    e(f"  s_mov_b32 s{sQ+2}, 256")
    e(f"  s_mov_b32 s{sQ+3}, 0x20000")
    e(f"  s_mov_b32 s{sO+2}, 256")
    e(f"  s_mov_b32 s{sO+3}, 0x20000")
    for i in range(nchunk):
        e(f"  s_mov_b32 s{sOffK+i}, {i*4096}")
        e(f"  s_mov_b32 s{sOffV+i}, {i*4096}")
    e("  s_waitcnt lgkmcnt(0)")
    e(f"  s_add_u32 s{sQ}, s44, s6")
    e(f"  s_addc_u32 s{sQ+1}, s45, 0")
    e(f"  s_add_u32 s{sK}, s46, s5")
    e(f"  s_addc_u32 s{sK+1}, s47, s4")
    e(f"  s_add_u32 s{sV}, s48, s5")
    e(f"  s_addc_u32 s{sV+1}, s49, s4")
    e(f"  s_add_u32 s{sO}, s50, s6")
    e(f"  s_addc_u32 s{sO+1}, s51, 0")
    e(f"  buffer_load_dwordx4 v[{vQ}:{vQ+3}], v2, s[{sQ}:{sQ+3}], 0 offen")

    def load(kind, buf, j):
        base = (vK if kind == "K" else vV) + (buf * T + j) * 4
        srd = sK if kind == "K" else sV
        so = (sOffK if kind == "K" else sOffV) + j // 4
        fl = kflags if kind == "K" else vflags
        e(f"  buffer_load_dwordx4 v[{base}:{base+3}], v{vOff}, s[{srd}:{srd+3}], s{so} offen offset:{(j%4)*1024} {fl}")

    def advance(kind):
        so = sOffK if kind == "K" else sOffV
        for i in range(nchunk):
            e(f"  s_add_u32 s{so+i}, s{so+i}, {iter_stride}")

    for b in range(DEPTH):
        for j in range(T):
            load("K", b, j)
        advance("K")
        for j in range(T):
            load("V", b, j)
        advance("V")
    e(f"  v_mov_b32 v{vM}, 0xff7fffff")
    e(f"  v_mov_b32 v{vL}, 0")
    for i in range(8):
        e(f"  v_mov_b32 v{vAcc+i}, 0")
    e(f"  s_mov_b32 s{sIter}, {iters // DEPTH}")
    R = 2 * DEPTH * T
    e("L_loop:")
    for b in range(DEPTH):
        for g0 in range(0, T, G):
            e(f"  s_waitcnt vmcnt({R-G})")
            if compute:
                for d in range(4):
                    for j in range(g0, g0 + G):
                        kr = vK + (b * T + j) * 4 + d
                        src2 = "0" if d == 0 else f"v{vS+j}"
                        e(f"  v_dot2_f32_bf16 v{vS+j}, v{kr}, v{vQ+d}, {src2}")
            else:
                for j in range(g0, g0 + G):
                    kr = vK + (b * T + j) * 4
                    e(f"  v_xor_b32 v{vAcc}, v{kr}, v{vAcc}")
            for j in range(g0, g0 + G):
                load("K", b, j)
        advance("K")
        if compute:
            if G < 4 or True:
                e("  s_nop 1")
            for sh in (8, 4, 2, 1):
                for j in range(T):
                    e(f"  v_add_f32_dpp v{vS+j}, v{vS+j}, v{vS+j} row_ror:{sh} row_mask:0xf bank_mask:0xf")
                if T < 3:
                    e("  s_nop 1")
            e(f"  v_max3_f32 v{vT0}, v{vS}, v{vS+1}, v{vS+2}")
            j = 3
            while j + 1 < T:
                e(f"  v_max3_f32 v{vT0}, v{vT0}, v{vS+j}, v{vS+j+1}")
                j += 2
            if j < T:
                e(f"  v_max_f32 v{vT0}, v{vT0}, v{vS+j}")
            e(f"  v_mul_f32 v{vT0}, s{sC}, v{vT0}")
            e(f"  v_max_f32 v{vT0}, v{vT0}, v{vM}")
            e(f"  v_sub_f32 v{vA}, v{vM}, v{vT0}")
            e(f"  v_mov_b32 v{vM}, v{vT0}")
            e(f"  v_exp_f32 v{vA}, v{vA}")
            for j in range(T):
                e(f"  v_fma_f32 v{vS+j}, v{vS+j}, s{sC}, -v{vM}")
            for j in range(T):
                e(f"  v_exp_f32 v{vS+j}, v{vS+j}")
            for i in range(0, 8, 2):
                e(f"  v_pk_mul_f32 v[{vAcc+i}:{vAcc+i+1}], v[{vAcc+i}:{vAcc+i+1}], v[{vA}:{vA+1}] op_sel_hi:[1,0]")
            e(f"  v_fma_f32 v{vL}, v{vL}, v{vA}, v{vS}")
            for j in range(1, T):
                e(f"  v_add_f32 v{vL}, v{vL}, v{vS+j}")
        for g0 in range(0, T, G):
            e(f"  s_waitcnt vmcnt({R-G})")
            for j in range(g0, g0 + G):
                vr = vV + (b * T + j) * 4
                if compute:
                    for d in range(4):
                        e(f"  v_lshlrev_b32 v{vTmp+2*d}, 16, v{vr+d}")
                        e(f"  v_and_b32 v{vTmp+2*d+1}, s{sMask}, v{vr+d}")
                    pj = vS + (j & ~1)
                    sel = j & 1
                    for d in range(4):
                        e(f"  v_pk_fma_f32 v[{vAcc+2*d}:{vAcc+2*d+1}], v[{vTmp+2*d}:{vTmp+2*d+1}], v[{pj}:{pj+1}], v[{vAcc+2*d}:{vAcc+2*d+1}] op_sel:[0,{sel},0] op_sel_hi:[1,{sel},1]")
                else:
                    e(f"  v_xor_b32 v{vAcc}, v{vr}, v{vAcc}")
            for j in range(g0, g0 + G):
                load("V", b, j)
        advance("V")
    e(f"  s_sub_u32 s{sIter}, s{sIter}, 1")
    e(f"  s_cmp_lg_u32 s{sIter}, 0")
    e("  s_cbranch_scc1 L_loop")

    t, t2 = vTmp, vTmp + 1
    e(f"  v_mov_b32 v{t}, v{vM}")
    e(f"  v_mov_b32 v{t2}, v{vM}")
    e("  s_nop 1")
    e(f"  v_permlane16_swap_b32 v{t}, v{t2}")
    e(f"  s_nop 1")
    e(f"  v_max_f32 v{t}, v{t}, v{t2}")
    e(f"  v_mov_b32 v{t2}, v{t}")
    e("  s_nop 1")
    e(f"  v_permlane32_swap_b32 v{t}, v{t2}")
    e(f"  s_nop 1")
    e(f"  v_max_f32 v{t}, v{t}, v{t2}")
    e(f"  v_sub_f32 v{vA}, v{vM}, v{t}")
    e(f"  v_exp_f32 v{vA}, v{vA}")
    e(f"  v_mov_b32 v{vM}, v{t}")
    e(f"  v_mul_f32 v{vL}, v{vL}, v{vA}")
    for i in range(8):
        e(f"  v_mul_f32 v{vAcc+i}, v{vAcc+i}, v{vA}")
    e(f"  v_mov_b32 v{t2}, v{vL}")
    e("  s_nop 1")
    e(f"  v_permlane16_swap_b32 v{vL}, v{t2}")
    for i in range(4):
        e(f"  v_permlane32_swap_b32 v{vAcc+i}, v{vAcc+i+4}")
    e(f"  v_add_f32 v{vL}, v{vL}, v{t2}")
    for i in range(4):
        e(f"  v_add_f32 v{vAcc+i}, v{vAcc+i}, v{vAcc+i+4}")
    e(f"  v_mov_b32 v{t2}, v{vL}")
    e("  s_nop 1")
    e(f"  v_permlane32_swap_b32 v{vL}, v{t2}")
    e(f"  v_permlane16_swap_b32 v{vAcc}, v{vAcc+2}")
    e(f"  v_permlane16_swap_b32 v{vAcc+1}, v{vAcc+3}")
    e("  s_nop 1")
    e(f"  v_add_f32 v{vL}, v{vL}, v{t2}")
    e(f"  v_add_f32 v{vAcc}, v{vAcc}, v{vAcc+2}")
    e(f"  v_add_f32 v{vAcc+1}, v{vAcc+1}, v{vAcc+3}")
    e(f"  v_and_b32 v2, 15, v3")
    e(f"  v_lshlrev_b32 v2, 5, v2")
    e(f"  v_lshrrev_b32 v{t}, 4, v3")
    e(f"  v_lshl_add_u32 v2, v{t}, 3, v2")
    e(f"  s_lshl_b32 s3, s{sWave}, 9")
    e(f"  v_add_u32 v2, s3, v2")
    e(f"  ds_write_b64 v2, v[{vAcc}:{vAcc+1}]")
    e(f"  s_lshl_b32 s3, s{sWave}, 3")
    e(f"  v_mov_b32 v2, s3")
    e(f"  v_cmp_eq_u32 vcc, 0, v3")
    e(f"  s_and_saveexec_b64 s[4:5], vcc")
    e(f"  ds_write_b64 v2, v[{vM}:{vM+1}] offset:{NW*512}")
    e(f"  s_mov_b64 exec, s[4:5]")
    e("  s_waitcnt lgkmcnt(0)")
    e("  s_barrier")
    e(f"  s_cmp_lg_u32 s{sWave}, 0")
    e("  s_cbranch_scc1 L_end")
    e("  s_waitcnt vmcnt(0)")
    st = vK
    dt = vK + 2 * NW
    assert dt + 2 * NW <= nv
    e(f"  v_mov_b32 v2, 0")
    e(f"  v_lshlrev_b32 v{t}, 3, v3")
    for w in range(NW):
        e(f"  ds_read_b64 v[{st+2*w}:{st+2*w+1}], v2 offset:{NW*512+w*8}")
    for w in range(NW):
        e(f"  ds_read_b64 v[{dt+2*w}:{dt+2*w+1}], v{t} offset:{w*512}")
    e("  s_waitcnt lgkmcnt(0)")
    e(f"  v_max_f32 v{vM}, v{st}, v{st+2}")
    for w in range(2, NW):
        e(f"  v_max_f32 v{vM}, v{vM}, v{st+2*w}")
    for w in range(NW):
        e(f"  v_sub_f32 v{st+2*w}, v{st+2*w}, v{vM}")
    for w in range(NW):
        e(f"  v_exp_f32 v{st+2*w}, v{st+2*w}")
    e("  s_nop 0")
    e(f"  v_mul_f32 v{vL}, v{st}, v{st+1}")
    e(f"  v_mul_f32 v{vAcc}, v{st}, v{dt}")
    e(f"  v_mul_f32 v{vAcc+1}, v{st}, v{dt+1}")
    for w in range(1, NW):
        e(f"  v_fmac_f32 v{vL}, v{st+2*w}, v{st+2*w+1}")
        e(f"  v_fmac_f32 v{vAcc}, v{st+2*w}, v{dt+2*w}")
        e(f"  v_fmac_f32 v{vAcc+1}, v{st+2*w}, v{dt+2*w+1}")
    e(f"  v_rcp_f32 v{vL}, v{vL}")
    e(f"  v_lshlrev_b32 v2, 2, v3")
    e(f"  v_mul_f32 v{vAcc}, v{vAcc}, v{vL}")
    e(f"  v_mul_f32 v{vAcc+1}, v{vAcc+1}, v{vL}")
    e(f"  v_cvt_pk_bf16_f32 v{vAcc}, v{vAcc}, v{vAcc+1}")
    e(f"  buffer_store_dword v{vAcc}, v2, s[{sO}:{sO+3}], 0 offen")
    e("L_end:")
    e("  s_endpgm")
    e('.section .rodata,"a"')
    e(".p2align 6")
    e(f".amdhsa_kernel {NAME}_kernel")
    e(f"  .amdhsa_next_free_vgpr {nv}")
    e(f"  .amdhsa_next_free_sgpr 56")
    e(f"  .amdhsa_accum_offset {(nv+3)//4*4}")
    e("  .amdhsa_group_segment_fixed_size 0")
    e("  .amdhsa_kernarg_size 48")
    e("  .amdhsa_user_sgpr_count 2")
    e("  .amdhsa_user_sgpr_kernarg_segment_ptr 1")
    e("  .amdhsa_system_sgpr_workgroup_id_x 1")
    e(".end_amdhsa_kernel")
    return "\n".join(L) + "\n"

if __name__ == "__main__":
    kw = {}
    out = sys.argv[1]
    for a in sys.argv[2:]:
        k, v = a.split("=", 1)
        if v in ("True", "False"):
            v = v == "True"
        else:
            try:
                v = int(v)
            except ValueError:
                v = v.replace("+", " ")
        kw[k] = v
    open(out, "w").write(gen(**kw))
```

```python
import sys, math, struct

NAME = "standalone__softmax_full_bidir__sampling"
HEADER = """; Kernarg layout for this problem (48 bytes, ptrs only, base s[0:1]):
"""
def f2u(x):
    return struct.unpack("<I", struct.pack("<f", x))[0]

def gen(NW=8, T=8, G=4, DEPTH=2, kflags="nt", vflags="nt", compute=True, stagger=0, lds_pad=0,
        wave_major=False, stamps=False, split=1, minv=0, vstag=0, unroll=0, trace=False):
    L = []
    e = L.append
    SKV = 4096 // split
    region = SKV * 256
    keys_per_wg_iter = NW * T * 4
    iters = SKV // keys_per_wg_iter
    assert iters * keys_per_wg_iter == SKV
    assert iters >= DEPTH
    tile_bytes = T * 1024
    if wave_major:
        iter_stride = tile_bytes
        wave_stride = region // NW
        wrap = wave_stride
    else:
        iter_stride = NW * tile_bytes
        wave_stride = tile_bytes
        wrap = region
    lds_bytes = max(NW * 512 + NW * 8, lds_pad)
    vOff = 1
    vQ = 4
    vM, vL, vA, vT0 = 8, 9, 10, 11
    vAcc = 12
    vTmp = 20
    vS = 28
    vK = (vS + T + 3) // 4 * 4
    vV = vK + DEPTH * T * 4
    nv = max(vV + DEPTH * T * 4, vK + 4 * NW, minv)
    vTr = nv
    if trace:
        nv += 1
    sK, sV, sQ, sO = 8, 12, 16, 20
    sOffK, sOffV = 24, 32
    sC, sMask, sIter, sWave = 40, 41, 42, 43
    sSt = 56
    nchunk = (T + 3) // 4
    c = (128 ** -0.5) * math.log2(math.e)
    NWG = 256 * split

    e(HEADER + f"; @launch grid=({NWG},1,1) block=({NW*64},1,1) lds={lds_bytes}")
    e('.amdgcn_target "amdgcn-amd-amdhsa--gfx950"')
    e(".text")
    e(f".globl {NAME}_kernel")
    e(".p2align 8")
    e(f".type {NAME}_kernel,@function")
    e(f"{NAME}_kernel:")
    if stamps:
        e(f"  s_memrealtime s[{sSt}:{sSt+1}]")
    e(f"  s_cmp_ge_u32 s2, {NWG}")
    e("  s_cbranch_scc1 L_end")
    e("  s_load_dwordx8 s[44:51], s[0:1], 0")
    if stamps:
        e("  s_load_dwordx2 s[64:65], s[0:1], 40")
    e("  v_lshrrev_b32 v2, 6, v0")
    e("  v_and_b32 v3, 63, v0")
    e(f"  v_readfirstlane_b32 s{sWave}, v2")
    e(f"  v_lshlrev_b32 v{vOff}, 4, v3")
    e(f"  v_and_b32 v2, 15, v3")
    e(f"  v_lshlrev_b32 v2, 4, v2")
    e(f"  s_mul_i32 s3, s{sWave}, {wave_stride}")
    e(f"  v_add_u32 v{vOff}, s3, v{vOff}")
    e(f"  s_mov_b32 s{sC}, {f2u(c):#x}")
    e(f"  s_mov_b32 s{sMask}, 0xffff0000")
    lg = int(math.log2(region))
    e(f"  s_lshr_b32 s4, s2, {32-lg}")
    e(f"  s_lshl_b32 s5, s2, {lg}")
    e(f"  s_lshr_b32 s6, s2, {int(math.log2(split))}")
    e(f"  s_lshl_b32 s6, s6, 8")
    e(f"  s_mov_b32 s{sK+2}, {region:#x}")
    e(f"  s_mov_b32 s{sK+3}, 0x20000")
    e(f"  s_mov_b32 s{sV+2}, {region:#x}")
    e(f"  s_mov_b32 s{sV+3}, 0x20000")
    e(f"  s_mov_b32 s{sQ+2}, 256")
    e(f"  s_mov_b32 s{sQ+3}, 0x20000")
    e(f"  s_mov_b32 s{sO+2}, 256")
    e(f"  s_mov_b32 s{sO+3}, 0x20000")
    if stagger:
        e(f"  s_mul_i32 s7, s2, {stagger * iter_stride}")
        e(f"  s_and_b32 s7, s7, {wrap-1:#x}")
    else:
        e(f"  s_mov_b32 s7, 0")
    for i in range(nchunk):
        e(f"  s_add_u32 s{sOffK+i}, s7, {i*4096}")
        e(f"  s_add_u32 s{sOffV+i}, s7, {i*4096}")
    e("  s_waitcnt lgkmcnt(0)")
    e(f"  s_add_u32 s{sQ}, s44, s6")
    e(f"  s_addc_u32 s{sQ+1}, s45, 0")
    e(f"  s_add_u32 s{sK}, s46, s5")
    e(f"  s_addc_u32 s{sK+1}, s47, s4")
    e(f"  s_add_u32 s{sV}, s48, s5")
    e(f"  s_addc_u32 s{sV+1}, s49, s4")
    e(f"  s_add_u32 s{sO}, s50, s6")
    e(f"  s_addc_u32 s{sO+1}, s51, 0")
    e(f"  buffer_load_dwordx4 v[{vQ}:{vQ+3}], v2, s[{sQ}:{sQ+3}], 0 offen")

    queue = []
    def load(kind, buf, j):
        base = (vK if kind == "K" else vV) + (buf * T + j) * 4
        srd = sK if kind == "K" else sV
        so = (sOffK if kind == "K" else sOffV) + j // 4
        fl = kflags if kind == "K" else vflags
        e(f"  buffer_load_dwordx4 v[{base}:{base+3}], v{vOff}, s[{srd}:{srd+3}], s{so} offen offset:{(j%4)*1024} {fl}")
        queue.append((kind, buf, j))
    def wait(kind, buf, j):
        idx = queue.index((kind, buf, j))
        n = len(queue) - 1 - idx
        assert n <= 63
        e(f"  s_waitcnt vmcnt({n})")
        del queue[:idx + 1]
    def advance(kind):
        so = sOffK if kind == "K" else sOffV
        if stagger:
            e(f"  s_add_u32 s{so}, s{so}, {iter_stride}")
            e(f"  s_and_b32 s{so}, s{so}, {wrap-1:#x}")
            for i in range(1, nchunk):
                e(f"  s_add_u32 s{so+i}, s{so}, {i*4096}")
        else:
            for i in range(nchunk):
                e(f"  s_add_u32 s{so+i}, s{so+i}, {iter_stride}")

    for b in range(DEPTH):
        for j in range(T):
            load("K", b, j)
        advance("K")
        for j in range(T):
            load("V", b, j)
        advance("V")
    e(f"  v_mov_b32 v{vM}, 0xff7fffff")
    e(f"  v_mov_b32 v{vL}, 0")
    for i in range(8):
        e(f"  v_mov_b32 v{vAcc+i}, 0")
    if stamps:
        e(f"  s_waitcnt vmcnt({len(queue)-1})")
        e(f"  s_memrealtime s[{sSt+2}:{sSt+3}]")

    def tile(b, do_loads):
        for g0 in range(0, T, G):
            wait("K", b, g0 + G - 1)
            if compute:
                for d in range(4):
                    for j in range(g0, g0 + G):
                        kr = vK + (b * T + j) * 4 + d
                        src2 = "0" if d == 0 else f"v{vS+j}"
                        e(f"  v_dot2_f32_bf16 v{vS+j}, v{kr}, v{vQ+d}, {src2}")
            else:
                for j in range(g0, g0 + G):
                    kr = vK + (b * T + j) * 4
                    e(f"  v_xor_b32 v{vAcc}, v{kr}, v{vAcc}")
            if do_loads:
                for j in range(g0, g0 + G):
                    load("K", b, j)
        if do_loads:
            advance("K")
        if compute:
            e("  s_nop 2")
            for sh in (8, 4, 2, 1):
                for j in range(T):
                    e(f"  v_add_f32_dpp v{vS+j}, v{vS+j}, v{vS+j} row_ror:{sh} row_mask:0xf bank_mask:0xf")
                if T < 3:
                    e("  s_nop 1")
            if T >= 3:
                e(f"  v_max3_f32 v{vT0}, v{vS}, v{vS+1}, v{vS+2}")
                j = 3
            else:
                e(f"  v_max_f32 v{vT0}, v{vS}, v{vS+1}")
                j = 2
            while j + 1 < T:
                e(f"  v_max3_f32 v{vT0}, v{vT0}, v{vS+j}, v{vS+j+1}")
                j += 2
            if j < T:
                e(f"  v_max_f32 v{vT0}, v{vT0}, v{vS+j}")
            e(f"  v_mul_f32 v{vT0}, s{sC}, v{vT0}")
            e(f"  v_max_f32 v{vT0}, v{vT0}, v{vM}")
            e(f"  v_sub_f32 v{vA}, v{vM}, v{vT0}")
            e(f"  v_mov_b32 v{vM}, v{vT0}")
            e(f"  v_exp_f32 v{vA}, v{vA}")
            for j in range(T):
                e(f"  v_fma_f32 v{vS+j}, v{vS+j}, s{sC}, -v{vM}")
            for j in range(T):
                e(f"  v_exp_f32 v{vS+j}, v{vS+j}")
            for i in range(0, 8, 2):
                e(f"  v_pk_mul_f32 v[{vAcc+i}:{vAcc+i+1}], v[{vAcc+i}:{vAcc+i+1}], v[{vA}:{vA+1}] op_sel_hi:[1,0]")
            e(f"  v_fma_f32 v{vL}, v{vL}, v{vA}, v{vS}")
            for j in range(1, T):
                e(f"  v_add_f32 v{vL}, v{vL}, v{vS+j}")
        for g0 in range(0, T, G):
            wait("V", b, g0 + G - 1)
            for j in range(g0, g0 + G):
                vr = vV + (b * T + j) * 4
                if compute:
                    for d in range(4):
                        e(f"  v_lshlrev_b32 v{vTmp+2*d}, 16, v{vr+d}")
                        e(f"  v_and_b32 v{vTmp+2*d+1}, s{sMask}, v{vr+d}")
                    pj = vS + (j & ~1)
                    sel = j & 1
                    for d in range(4):
                        e(f"  v_pk_fma_f32 v[{vAcc+2*d}:{vAcc+2*d+1}], v[{vTmp+2*d}:{vTmp+2*d+1}], v[{pj}:{pj+1}], v[{vAcc+2*d}:{vAcc+2*d+1}] op_sel:[0,{sel},0] op_sel_hi:[1,{sel},1]")
                else:
                    e(f"  v_xor_b32 v{vAcc}, v{vr}, v{vAcc}")
            if do_loads:
                for j in range(g0, g0 + G):
                    load("V", b, j)
        if do_loads:
            advance("V")

    nloop = (iters - DEPTH) // DEPTH
    if nloop > 0:
        e(f"  s_mov_b32 s{sIter}, {nloop}")
        q0 = list(queue)
        e("L_loop:")
        for b in range(DEPTH):
            tile(b, True)
        assert queue == q0
        if trace:
            e("  s_memrealtime s[68:69]")
            e(f"  s_sub_u32 m0, {nloop}, s{sIter}")
            e("  s_waitcnt lgkmcnt(0)")
            e(f"  v_writelane_b32 v{vTr}, s68, m0")
        e(f"  s_sub_u32 s{sIter}, s{sIter}, 1")
        e(f"  s_cmp_lg_u32 s{sIter}, 0")
        e("  s_cbranch_scc1 L_loop")
    for i in range(nloop * DEPTH, iters):
        tile(i % DEPTH, i + DEPTH < iters)
    assert not queue
    if stamps:
        e(f"  s_memrealtime s[{sSt+4}:{sSt+5}]")

    t, t2 = vTmp, vTmp + 1
    e(f"  v_mov_b32 v{t}, v{vM}")
    e(f"  v_mov_b32 v{t2}, v{vM}")
    e("  s_nop 1")
    e(f"  v_permlane16_swap_b32 v{t}, v{t2}")
    e(f"  s_nop 1")
    e(f"  v_max_f32 v{t}, v{t}, v{t2}")
    e(f"  v_mov_b32 v{t2}, v{t}")
    e("  s_nop 1")
    e(f"  v_permlane32_swap_b32 v{t}, v{t2}")
    e(f"  s_nop 1")
    e(f"  v_max_f32 v{t}, v{t}, v{t2}")
    e(f"  v_sub_f32 v{vA}, v{vM}, v{t}")
    e(f"  v_exp_f32 v{vA}, v{vA}")
    e(f"  v_mov_b32 v{vM}, v{t}")
    e(f"  v_mul_f32 v{vL}, v{vL}, v{vA}")
    for i in range(8):
        e(f"  v_mul_f32 v{vAcc+i}, v{vAcc+i}, v{vA}")
    e(f"  v_mov_b32 v{t2}, v{vL}")
    e("  s_nop 1")
    e(f"  v_permlane16_swap_b32 v{vL}, v{t2}")
    for i in range(4):
        e(f"  v_permlane32_swap_b32 v{vAcc+i}, v{vAcc+i+4}")
    e(f"  v_add_f32 v{vL}, v{vL}, v{t2}")
    for i in range(4):
        e(f"  v_add_f32 v{vAcc+i}, v{vAcc+i}, v{vAcc+i+4}")
    e(f"  v_mov_b32 v{t2}, v{vL}")
    e("  s_nop 1")
    e(f"  v_permlane32_swap_b32 v{vL}, v{t2}")
    e(f"  v_permlane16_swap_b32 v{vAcc}, v{vAcc+2}")
    e(f"  v_permlane16_swap_b32 v{vAcc+1}, v{vAcc+3}")
    e("  s_nop 1")
    e(f"  v_add_f32 v{vL}, v{vL}, v{t2}")
    e(f"  v_add_f32 v{vAcc}, v{vAcc}, v{vAcc+2}")
    e(f"  v_add_f32 v{vAcc+1}, v{vAcc+1}, v{vAcc+3}")
    e(f"  v_and_b32 v2, 15, v3")
    e(f"  v_lshlrev_b32 v2, 5, v2")
    e(f"  v_lshrrev_b32 v{t}, 4, v3")
    e(f"  v_lshl_add_u32 v2, v{t}, 3, v2")
    e(f"  s_lshl_b32 s3, s{sWave}, 9")
    e(f"  v_add_u32 v2, s3, v2")
    e(f"  ds_write_b64 v2, v[{vAcc}:{vAcc+1}]")
    e(f"  s_lshl_b32 s3, s{sWave}, 3")
    e(f"  v_mov_b32 v2, s3")
    e(f"  v_cmp_eq_u32 vcc, 0, v3")
    e(f"  s_and_saveexec_b64 s[4:5], vcc")
    e(f"  ds_write_b64 v2, v[{vM}:{vM+1}] offset:{NW*512}")
    e(f"  s_mov_b64 exec, s[4:5]")
    e("  s_waitcnt lgkmcnt(0)")
    e("  s_barrier")
    e(f"  s_cmp_lg_u32 s{sWave}, 0")
    e("  s_cbranch_scc1 L_end")
    st = vK
    dt = vK + 2 * NW
    e(f"  v_mov_b32 v2, 0")
    e(f"  v_lshlrev_b32 v{t}, 3, v3")
    for w in range(NW):
        e(f"  ds_read_b64 v[{st+2*w}:{st+2*w+1}], v2 offset:{NW*512+w*8}")
    for w in range(NW):
        e(f"  ds_read_b64 v[{dt+2*w}:{dt+2*w+1}], v{t} offset:{w*512}")
    e("  s_waitcnt lgkmcnt(0)")
    if NW > 1:
        e(f"  v_max_f32 v{vM}, v{st}, v{st+2}")
    for w in range(2, NW):
        e(f"  v_max_f32 v{vM}, v{vM}, v{st+2*w}")
    for w in range(NW):
        e(f"  v_sub_f32 v{st+2*w}, v{st+2*w}, v{vM}")
    for w in range(NW):
        e(f"  v_exp_f32 v{st+2*w}, v{st+2*w}")
    e("  s_nop 0")
    e(f"  v_mul_f32 v{vL}, v{st}, v{st+1}")
    e(f"  v_mul_f32 v{vAcc}, v{st}, v{dt}")
    e(f"  v_mul_f32 v{vAcc+1}, v{st}, v{dt+1}")
    for w in range(1, NW):
        e(f"  v_fmac_f32 v{vL}, v{st+2*w}, v{st+2*w+1}")
        e(f"  v_fmac_f32 v{vAcc}, v{st+2*w}, v{dt+2*w}")
        e(f"  v_fmac_f32 v{vAcc+1}, v{st+2*w}, v{dt+2*w+1}")
    e(f"  v_rcp_f32 v{vL}, v{vL}")
    e(f"  v_lshlrev_b32 v2, 2, v3")
    e(f"  v_mul_f32 v{vAcc}, v{vAcc}, v{vL}")
    e(f"  v_mul_f32 v{vAcc+1}, v{vAcc+1}, v{vL}")
    e(f"  v_cvt_pk_bf16_f32 v{vAcc}, v{vAcc}, v{vAcc+1}")
    e(f"  buffer_store_dword v{vAcc}, v2, s[{sO}:{sO+3}], 0 offen")
    if stamps:
        e("  s_waitcnt vmcnt(0)")
        e(f"  s_memrealtime s[{sSt+6}:{sSt+7}]")
        e("  s_getreg_b32 s66, hwreg(HW_REG_HW_ID)")
        e("  s_getreg_b32 s67, hwreg(HW_REG_XCC_ID)")
        e("  s_lshl_b32 s3, s2, 6")
        e("  s_add_u32 s64, s64, s3")
        e("  s_addc_u32 s65, s65, 0")
        e("  s_waitcnt lgkmcnt(0)")
        for i in range(8):
            e(f"  v_mov_b32 v{vK+i}, s{sSt+i}")
        e(f"  v_mov_b32 v{vK+8}, s66")
        e(f"  v_mov_b32 v{vK+9}, s67")
        if trace:
            e(f"  s_mul_i32 s3, s2, 192")
            e(f"  s_add_u32 s3, s3, 0x100000")
            e(f"  v_lshl_add_u32 v2, v3, 2, s3")
            e(f"  global_store_dword v2, v{vTr}, s[64:65]")
        e(f"  v_mov_b32 v2, 0")
        e(f"  v_cmp_eq_u32 vcc, 0, v3")
        e(f"  s_and_saveexec_b64 s[4:5], vcc")
        e(f"  global_store_dwordx4 v2, v[{vK}:{vK+3}], s[64:65]")
        e(f"  global_store_dwordx4 v2, v[{vK+4}:{vK+7}], s[64:65] offset:16")
        e(f"  global_store_dwordx2 v2, v[{vK+8}:{vK+9}], s[64:65] offset:56")
    e("L_end:")
    e("  s_endpgm")
    e('.section .rodata,"a"')
    e(".p2align 6")
    e(f".amdhsa_kernel {NAME}_kernel")
    e(f"  .amdhsa_next_free_vgpr {nv}")
    e(f"  .amdhsa_next_free_sgpr 72")
    e(f"  .amdhsa_accum_offset {(nv+3)//4*4}")
    e("  .amdhsa_group_segment_fixed_size 0")
    e("  .amdhsa_kernarg_size 48")
    e("  .amdhsa_user_sgpr_count 2")
    e("  .amdhsa_user_sgpr_kernarg_segment_ptr 1")
    e("  .amdhsa_system_sgpr_workgroup_id_x 1")
    e(".end_amdhsa_kernel")
    return "\n".join(L) + "\n"

if __name__ == "__main__":
    kw = {}
    out = sys.argv[1]
    for a in sys.argv[2:]:
        k, v = a.split("=", 1)
        if v in ("True", "False"):
            v = v == "True"
        else:
            try:
                v = int(v)
            except ValueError:
                v = v.replace("+", " ")
        kw[k] = v
    open(out, "w").write(gen(**kw))
```

```python
import sys, math, struct

NAME = "standalone__softmax_full_bidir__sampling"
HEADER = """; Kernarg layout for this problem (48 bytes, ptrs only, base s[0:1]):
"""
def f2u(x):
    return struct.unpack("<I", struct.pack("<f", x))[0]

def gen(NW=8, T=8, G=4, DEPTH=2, kflags="nt", vflags="nt", compute=True, stagger=0, lds_pad=0,
        wave_major=False, stamps=False, split=1, minv=0, vstag=0, unroll=0, trace=False, dstamp=False):
    L = []
    e = L.append
    SKV = 4096 // split
    region = SKV * 256
    keys_per_wg_iter = NW * T * 4
    iters = SKV // keys_per_wg_iter
    assert iters * keys_per_wg_iter == SKV
    assert iters >= DEPTH
    tile_bytes = T * 1024
    if wave_major:
        iter_stride = tile_bytes
        wave_stride = region // NW
        wrap = wave_stride
    else:
        iter_stride = NW * tile_bytes
        wave_stride = tile_bytes
        wrap = region
    lds_bytes = max(NW * 512 + NW * 8, lds_pad)
    vOff = 1
    vQ = 4
    vM, vL, vA, vT0 = 8, 9, 10, 11
    vAcc = 12
    vTmp = 20
    vS = 28
    vK = (vS + T + 3) // 4 * 4
    vV = vK + DEPTH * T * 4
    nv = max(vV + DEPTH * T * 4, vK + 4 * NW, minv)
    vTr = nv
    if trace:
        nv += 1
    sK, sV, sQ, sO = 8, 12, 16, 20
    sOffK, sOffV = 24, 32
    sC, sMask, sIter, sWave = 40, 41, 42, 43
    sSt = 56
    nchunk = (T + 3) // 4
    c = (128 ** -0.5) * math.log2(math.e)
    NWG = 256 * split

    e(HEADER + f"; @launch grid=({NWG},1,1) block=({NW*64},1,1) lds={lds_bytes}")
    e('.amdgcn_target "amdgcn-amd-amdhsa--gfx950"')
    e(".text")
    e(f".globl {NAME}_kernel")
    e(".p2align 8")
    e(f".type {NAME}_kernel,@function")
    e(f"{NAME}_kernel:")
    if stamps:
        e(f"  s_memrealtime s[{sSt}:{sSt+1}]")
    e(f"  s_cmp_ge_u32 s2, {NWG}")
    e("  s_cbranch_scc1 L_end")
    e("  s_load_dwordx8 s[44:51], s[0:1], 0")
    if stamps:
        e(f"  s_load_dwordx2 s[64:65], s[0:1], {32 if dstamp else 40}")
    e("  v_lshrrev_b32 v2, 6, v0")
    e("  v_and_b32 v3, 63, v0")
    e(f"  v_readfirstlane_b32 s{sWave}, v2")
    e(f"  v_lshlrev_b32 v{vOff}, 4, v3")
    e(f"  v_and_b32 v2, 15, v3")
    e(f"  v_lshlrev_b32 v2, 4, v2")
    e(f"  s_mul_i32 s3, s{sWave}, {wave_stride}")
    e(f"  v_add_u32 v{vOff}, s3, v{vOff}")
    e(f"  s_mov_b32 s{sC}, {f2u(c):#x}")
    e(f"  s_mov_b32 s{sMask}, 0xffff0000")
    lg = int(math.log2(region))
    e(f"  s_lshr_b32 s4, s2, {32-lg}")
    e(f"  s_lshl_b32 s5, s2, {lg}")
    e(f"  s_lshr_b32 s6, s2, {int(math.log2(split))}")
    e(f"  s_lshl_b32 s6, s6, 8")
    e(f"  s_mov_b32 s{sK+2}, {region:#x}")
    e(f"  s_mov_b32 s{sK+3}, 0x20000")
    e(f"  s_mov_b32 s{sV+2}, {region:#x}")
    e(f"  s_mov_b32 s{sV+3}, 0x20000")
    e(f"  s_mov_b32 s{sQ+2}, 256")
    e(f"  s_mov_b32 s{sQ+3}, 0x20000")
    e(f"  s_mov_b32 s{sO+2}, 256")
    e(f"  s_mov_b32 s{sO+3}, 0x20000")
    if stagger:
        e(f"  s_mul_i32 s7, s2, {stagger * iter_stride}")
        e(f"  s_and_b32 s7, s7, {wrap-1:#x}")
    else:
        e(f"  s_mov_b32 s7, 0")
    for i in range(nchunk):
        e(f"  s_add_u32 s{sOffK+i}, s7, {i*4096}")
        e(f"  s_add_u32 s{sOffV+i}, s7, {i*4096}")
    e("  s_waitcnt lgkmcnt(0)")
    e(f"  s_add_u32 s{sQ}, s44, s6")
    e(f"  s_addc_u32 s{sQ+1}, s45, 0")
    e(f"  s_add_u32 s{sK}, s46, s5")
    e(f"  s_addc_u32 s{sK+1}, s47, s4")
    e(f"  s_add_u32 s{sV}, s48, s5")
    e(f"  s_addc_u32 s{sV+1}, s49, s4")
    e(f"  s_add_u32 s{sO}, s50, s6")
    e(f"  s_addc_u32 s{sO+1}, s51, 0")
    e(f"  buffer_load_dwordx4 v[{vQ}:{vQ+3}], v2, s[{sQ}:{sQ+3}], 0 offen")

    queue = []
    def load(kind, buf, j):
        base = (vK if kind == "K" else vV) + (buf * T + j) * 4
        srd = sK if kind == "K" else sV
        so = (sOffK if kind == "K" else sOffV) + j // 4
        fl = kflags if kind == "K" else vflags
        e(f"  buffer_load_dwordx4 v[{base}:{base+3}], v{vOff}, s[{srd}:{srd+3}], s{so} offen offset:{(j%4)*1024} {fl}")
        queue.append((kind, buf, j))
    def wait(kind, buf, j):
        idx = queue.index((kind, buf, j))
        n = len(queue) - 1 - idx
        assert n <= 63
        e(f"  s_waitcnt vmcnt({n})")
        del queue[:idx + 1]
    def advance(kind):
        so = sOffK if kind == "K" else sOffV
        if stagger:
            e(f"  s_add_u32 s{so}, s{so}, {iter_stride}")
            e(f"  s_and_b32 s{so}, s{so}, {wrap-1:#x}")
            for i in range(1, nchunk):
                e(f"  s_add_u32 s{so+i}, s{so}, {i*4096}")
        else:
            for i in range(nchunk):
                e(f"  s_add_u32 s{so+i}, s{so+i}, {iter_stride}")

    for b in range(DEPTH):
        for j in range(T):
            load("K", b, j)
        advance("K")
        for j in range(T):
            load("V", b, j)
        advance("V")
    e(f"  v_mov_b32 v{vM}, 0xff7fffff")
    e(f"  v_mov_b32 v{vL}, 0")
    for i in range(8):
        e(f"  v_mov_b32 v{vAcc+i}, 0")
    if stamps:
        e(f"  s_waitcnt vmcnt({len(queue)-1})")
        e(f"  s_memrealtime s[{sSt+2}:{sSt+3}]")

    def tile(b, do_loads):
        for g0 in range(0, T, G):
            wait("K", b, g0 + G - 1)
            if compute:
                for d in range(4):
                    for j in range(g0, g0 + G):
                        kr = vK + (b * T + j) * 4 + d
                        src2 = "0" if d == 0 else f"v{vS+j}"
                        e(f"  v_dot2_f32_bf16 v{vS+j}, v{kr}, v{vQ+d}, {src2}")
            else:
                for j in range(g0, g0 + G):
                    kr = vK + (b * T + j) * 4
                    e(f"  v_xor_b32 v{vAcc}, v{kr}, v{vAcc}")
            if do_loads:
                for j in range(g0, g0 + G):
                    load("K", b, j)
        if do_loads:
            advance("K")
        if compute:
            e("  s_nop 2")
            for sh in (8, 4, 2, 1):
                for j in range(T):
                    e(f"  v_add_f32_dpp v{vS+j}, v{vS+j}, v{vS+j} row_ror:{sh} row_mask:0xf bank_mask:0xf")
                if T < 3:
                    e("  s_nop 1")
            if T >= 3:
                e(f"  v_max3_f32 v{vT0}, v{vS}, v{vS+1}, v{vS+2}")
                j = 3
            else:
                e(f"  v_max_f32 v{vT0}, v{vS}, v{vS+1}")
                j = 2
            while j + 1 < T:
                e(f"  v_max3_f32 v{vT0}, v{vT0}, v{vS+j}, v{vS+j+1}")
                j += 2
            if j < T:
                e(f"  v_max_f32 v{vT0}, v{vT0}, v{vS+j}")
            e(f"  v_mul_f32 v{vT0}, s{sC}, v{vT0}")
            e(f"  v_max_f32 v{vT0}, v{vT0}, v{vM}")
            e(f"  v_sub_f32 v{vA}, v{vM}, v{vT0}")
            e(f"  v_mov_b32 v{vM}, v{vT0}")
            e(f"  v_exp_f32 v{vA}, v{vA}")
            for j in range(T):
                e(f"  v_fma_f32 v{vS+j}, v{vS+j}, s{sC}, -v{vM}")
            for j in range(T):
                e(f"  v_exp_f32 v{vS+j}, v{vS+j}")
            for i in range(0, 8, 2):
                e(f"  v_pk_mul_f32 v[{vAcc+i}:{vAcc+i+1}], v[{vAcc+i}:{vAcc+i+1}], v[{vA}:{vA+1}] op_sel_hi:[1,0]")
            e(f"  v_fma_f32 v{vL}, v{vL}, v{vA}, v{vS}")
            for j in range(1, T):
                e(f"  v_add_f32 v{vL}, v{vL}, v{vS+j}")
        for g0 in range(0, T, G):
            wait("V", b, g0 + G - 1)
            for j in range(g0, g0 + G):
                vr = vV + (b * T + j) * 4
                if compute:
                    for d in range(4):
                        e(f"  v_lshlrev_b32 v{vTmp+2*d}, 16, v{vr+d}")
                        e(f"  v_and_b32 v{vTmp+2*d+1}, s{sMask}, v{vr+d}")
                    pj = vS + (j & ~1)
                    sel = j & 1
                    for d in range(4):
                        e(f"  v_pk_fma_f32 v[{vAcc+2*d}:{vAcc+2*d+1}], v[{vTmp+2*d}:{vTmp+2*d+1}], v[{pj}:{pj+1}], v[{vAcc+2*d}:{vAcc+2*d+1}] op_sel:[0,{sel},0] op_sel_hi:[1,{sel},1]")
                else:
                    e(f"  v_xor_b32 v{vAcc}, v{vr}, v{vAcc}")
            if do_loads:
                for j in range(g0, g0 + G):
                    load("V", b, j)
        if do_loads:
            advance("V")

    nloop = (iters - DEPTH) // DEPTH
    if nloop > 0:
        e(f"  s_mov_b32 s{sIter}, {nloop}")
        q0 = list(queue)
        e("L_loop:")
        for b in range(DEPTH):
            tile(b, True)
        assert queue == q0
        if trace:
            e("  s_memrealtime s[68:69]")
            e(f"  s_sub_u32 m0, {nloop}, s{sIter}")
            e("  s_waitcnt lgkmcnt(0)")
            e(f"  v_writelane_b32 v{vTr}, s68, m0")
        e(f"  s_sub_u32 s{sIter}, s{sIter}, 1")
        e(f"  s_cmp_lg_u32 s{sIter}, 0")
        e("  s_cbranch_scc1 L_loop")
    for i in range(nloop * DEPTH, iters):
        tile(i % DEPTH, i + DEPTH < iters)
    assert not queue
    if stamps:
        e(f"  s_memrealtime s[{sSt+4}:{sSt+5}]")

    t, t2 = vTmp, vTmp + 1
    e(f"  v_mov_b32 v{t}, v{vM}")
    e(f"  v_mov_b32 v{t2}, v{vM}")
    e("  s_nop 1")
    e(f"  v_permlane16_swap_b32 v{t}, v{t2}")
    e(f"  s_nop 1")
    e(f"  v_max_f32 v{t}, v{t}, v{t2}")
    e(f"  v_mov_b32 v{t2}, v{t}")
    e("  s_nop 1")
    e(f"  v_permlane32_swap_b32 v{t}, v{t2}")
    e(f"  s_nop 1")
    e(f"  v_max_f32 v{t}, v{t}, v{t2}")
    e(f"  v_sub_f32 v{vA}, v{vM}, v{t}")
    e(f"  v_exp_f32 v{vA}, v{vA}")
    e(f"  v_mov_b32 v{vM}, v{t}")
    e(f"  v_mul_f32 v{vL}, v{vL}, v{vA}")
    for i in range(8):
        e(f"  v_mul_f32 v{vAcc+i}, v{vAcc+i}, v{vA}")
    e(f"  v_mov_b32 v{t2}, v{vL}")
    e("  s_nop 1")
    e(f"  v_permlane16_swap_b32 v{vL}, v{t2}")
    for i in range(4):
        e(f"  v_permlane32_swap_b32 v{vAcc+i}, v{vAcc+i+4}")
    e(f"  v_add_f32 v{vL}, v{vL}, v{t2}")
    for i in range(4):
        e(f"  v_add_f32 v{vAcc+i}, v{vAcc+i}, v{vAcc+i+4}")
    e(f"  v_mov_b32 v{t2}, v{vL}")
    e("  s_nop 1")
    e(f"  v_permlane32_swap_b32 v{vL}, v{t2}")
    e(f"  v_permlane16_swap_b32 v{vAcc}, v{vAcc+2}")
    e(f"  v_permlane16_swap_b32 v{vAcc+1}, v{vAcc+3}")
    e("  s_nop 1")
    e(f"  v_add_f32 v{vL}, v{vL}, v{t2}")
    e(f"  v_add_f32 v{vAcc}, v{vAcc}, v{vAcc+2}")
    e(f"  v_add_f32 v{vAcc+1}, v{vAcc+1}, v{vAcc+3}")
    e(f"  v_and_b32 v2, 15, v3")
    e(f"  v_lshlrev_b32 v2, 5, v2")
    e(f"  v_lshrrev_b32 v{t}, 4, v3")
    e(f"  v_lshl_add_u32 v2, v{t}, 3, v2")
    e(f"  s_lshl_b32 s3, s{sWave}, 9")
    e(f"  v_add_u32 v2, s3, v2")
    e(f"  ds_write_b64 v2, v[{vAcc}:{vAcc+1}]")
    e(f"  s_lshl_b32 s3, s{sWave}, 3")
    e(f"  v_mov_b32 v2, s3")
    e(f"  v_cmp_eq_u32 vcc, 0, v3")
    e(f"  s_and_saveexec_b64 s[4:5], vcc")
    e(f"  ds_write_b64 v2, v[{vM}:{vM+1}] offset:{NW*512}")
    e(f"  s_mov_b64 exec, s[4:5]")
    e("  s_waitcnt lgkmcnt(0)")
    e("  s_barrier")
    e(f"  s_cmp_lg_u32 s{sWave}, 0")
    e("  s_cbranch_scc1 L_end")
    st = vK
    dt = vK + 2 * NW
    e(f"  v_mov_b32 v2, 0")
    e(f"  v_lshlrev_b32 v{t}, 3, v3")
    for w in range(NW):
        e(f"  ds_read_b64 v[{st+2*w}:{st+2*w+1}], v2 offset:{NW*512+w*8}")
    for w in range(NW):
        e(f"  ds_read_b64 v[{dt+2*w}:{dt+2*w+1}], v{t} offset:{w*512}")
    e("  s_waitcnt lgkmcnt(0)")
    if NW > 1:
        e(f"  v_max_f32 v{vM}, v{st}, v{st+2}")
    for w in range(2, NW):
        e(f"  v_max_f32 v{vM}, v{vM}, v{st+2*w}")
    for w in range(NW):
        e(f"  v_sub_f32 v{st+2*w}, v{st+2*w}, v{vM}")
    for w in range(NW):
        e(f"  v_exp_f32 v{st+2*w}, v{st+2*w}")
    e("  s_nop 0")
    e(f"  v_mul_f32 v{vL}, v{st}, v{st+1}")
    e(f"  v_mul_f32 v{vAcc}, v{st}, v{dt}")
    e(f"  v_mul_f32 v{vAcc+1}, v{st}, v{dt+1}")
    for w in range(1, NW):
        e(f"  v_fmac_f32 v{vL}, v{st+2*w}, v{st+2*w+1}")
        e(f"  v_fmac_f32 v{vAcc}, v{st+2*w}, v{dt+2*w}")
        e(f"  v_fmac_f32 v{vAcc+1}, v{st+2*w}, v{dt+2*w+1}")
    e(f"  v_rcp_f32 v{vL}, v{vL}")
    e(f"  v_lshlrev_b32 v2, 2, v3")
    e(f"  v_mul_f32 v{vAcc}, v{vAcc}, v{vL}")
    e(f"  v_mul_f32 v{vAcc+1}, v{vAcc+1}, v{vL}")
    e(f"  v_cvt_pk_bf16_f32 v{vAcc}, v{vAcc}, v{vAcc+1}")
    e(f"  buffer_store_dword v{vAcc}, v2, s[{sO}:{sO+3}], 0 offen")
    if stamps and dstamp:
        e("  s_waitcnt vmcnt(0)")
        e(f"  s_memrealtime s[{sSt+6}:{sSt+7}]")
        e("  s_waitcnt lgkmcnt(0)")
        e(f"  v_mov_b32 v2, 0")
        e(f"  v_cmp_eq_u32 vcc, 0, v3")
        e(f"  s_and_saveexec_b64 s[4:5], vcc")
        e(f"  v_mov_b32 v{vK}, s{sSt+6}")
        e(f"  s_not_b32 s3, s{sSt}")
        e(f"  v_mov_b32 v{vK+1}, s3")
        e(f"  s_not_b32 s3, s{sSt+6}")
        e(f"  v_mov_b32 v{vK+2}, s3")
        e(f"  v_mov_b32 v{vK+3}, s{sSt}")
        e(f"  v_mov_b32 v{vK+4}, s{sSt+2}")
        e(f"  s_sub_u32 s3, s{sSt+6}, s{sSt}")
        e(f"  v_mov_b32 v{vK+5}, s3")
        e(f"  s_sub_u32 s3, s{sSt+2}, s{sSt}")
        e(f"  v_mov_b32 v{vK+6}, s3")
        for i in range(5):
            e(f"  global_atomic_umax v2, v{vK+i}, s[64:65] offset:{i*4} sc1")
        e(f"  global_atomic_add v2, v{vK+5}, s[64:65] offset:20 sc1")
        e(f"  global_atomic_add v2, v{vK+6}, s[64:65] offset:24 sc1")
    elif stamps:
        e("  s_waitcnt vmcnt(0)")
        e(f"  s_memrealtime s[{sSt+6}:{sSt+7}]")
        e("  s_getreg_b32 s66, hwreg(HW_REG_HW_ID)")
        e("  s_getreg_b32 s67, hwreg(HW_REG_XCC_ID)")
        e("  s_lshl_b32 s3, s2, 6")
        e("  s_add_u32 s64, s64, s3")
        e("  s_addc_u32 s65, s65, 0")
        e("  s_waitcnt lgkmcnt(0)")
        for i in range(8):
            e(f"  v_mov_b32 v{vK+i}, s{sSt+i}")
        e(f"  v_mov_b32 v{vK+8}, s66")
        e(f"  v_mov_b32 v{vK+9}, s67")
        if trace:
            e(f"  s_mul_i32 s3, s2, 192")
            e(f"  s_add_u32 s3, s3, 0x100000")
            e(f"  v_lshl_add_u32 v2, v3, 2, s3")
            e(f"  global_store_dword v2, v{vTr}, s[64:65]")
        e(f"  v_mov_b32 v2, 0")
        e(f"  v_cmp_eq_u32 vcc, 0, v3")
        e(f"  s_and_saveexec_b64 s[4:5], vcc")
        e(f"  global_store_dwordx4 v2, v[{vK}:{vK+3}], s[64:65]")
        e(f"  global_store_dwordx4 v2, v[{vK+4}:{vK+7}], s[64:65] offset:16")
        e(f"  global_store_dwordx2 v2, v[{vK+8}:{vK+9}], s[64:65] offset:56")
    e("L_end:")
    e("  s_endpgm")
    e('.section .rodata,"a"')
    e(".p2align 6")
    e(f".amdhsa_kernel {NAME}_kernel")
    e(f"  .amdhsa_next_free_vgpr {nv}")
    e(f"  .amdhsa_next_free_sgpr 72")
    e(f"  .amdhsa_accum_offset {(nv+3)//4*4}")
    e("  .amdhsa_group_segment_fixed_size 0")
    e("  .amdhsa_kernarg_size 48")
    e("  .amdhsa_user_sgpr_count 2")
    e("  .amdhsa_user_sgpr_kernarg_segment_ptr 1")
    e("  .amdhsa_system_sgpr_workgroup_id_x 1")
    e(".end_amdhsa_kernel")
    return "\n".join(L) + "\n"

if __name__ == "__main__":
    kw = {}
    out = sys.argv[1]
    for a in sys.argv[2:]:
        k, v = a.split("=", 1)
        if v in ("True", "False"):
            v = v == "True"
        else:
            try:
                v = int(v)
            except ValueError:
                v = v.replace("+", " ")
        kw[k] = v
    open(out, "w").write(gen(**kw))
```

```python
import sys, math, struct

NAME = "standalone__softmax_full_bidir__sampling"
HEADER = """; Kernarg layout for this problem (48 bytes, ptrs only, base s[0:1]):
"""
def f2u(x):
    return struct.unpack("<I", struct.pack("<f", x))[0]

def gen(NW=8, T=8, G=4, DEPTH=2, kflags="nt", vflags="nt", compute=True, stagger=0, lds_pad=0,
        wave_major=False, stamps=False, split=1, minv=0, vstag=0, unroll=0, trace=False, dstamp=False):
    L = []
    e = L.append
    SKV = 4096 // split
    region = SKV * 256
    keys_per_wg_iter = NW * T * 4
    iters = SKV // keys_per_wg_iter
    assert iters * keys_per_wg_iter == SKV
    assert iters >= DEPTH
    tile_bytes = T * 1024
    if wave_major:
        iter_stride = tile_bytes
        wave_stride = region // NW
        wrap = wave_stride
    else:
        iter_stride = NW * tile_bytes
        wave_stride = tile_bytes
        wrap = region
    lds_bytes = max(NW * 512 + NW * 8, lds_pad)
    vOff = 1
    vQ = 4
    vM, vL, vA, vT0 = 8, 9, 10, 11
    vAcc = 12
    vTmp = 20
    vS = 28
    vK = (vS + T + 3) // 4 * 4
    vV = vK + DEPTH * T * 4
    nv = max(vV + DEPTH * T * 4, vK + 4 * NW, minv)
    vTr = nv
    if trace:
        nv += 1
    sK, sV, sQ, sO = 8, 12, 16, 20
    sOffK, sOffV = 24, 32
    sC, sMask, sIter, sWave = 40, 41, 42, 43
    sSt = 56
    nchunk = (T + 3) // 4
    c = (128 ** -0.5) * math.log2(math.e)
    NWG = 256 * split

    e(HEADER + f"; @launch grid=({NWG},1,1) block=({NW*64},1,1) lds={lds_bytes}")
    e('.amdgcn_target "amdgcn-amd-amdhsa--gfx950"')
    e(".text")
    e(f".globl {NAME}_kernel")
    e(".p2align 8")
    e(f".type {NAME}_kernel,@function")
    e(f"{NAME}_kernel:")
    if stamps:
        e(f"  s_memrealtime s[{sSt}:{sSt+1}]")
    e(f"  s_cmp_ge_u32 s2, {NWG}")
    e("  s_cbranch_scc1 L_end")
    e("  s_load_dwordx8 s[44:51], s[0:1], 0")
    if stamps:
        e(f"  s_load_dwordx2 s[64:65], s[0:1], {32 if dstamp else 40}")
    e("  v_lshrrev_b32 v2, 6, v0")
    e("  v_and_b32 v3, 63, v0")
    e(f"  v_readfirstlane_b32 s{sWave}, v2")
    e(f"  v_lshlrev_b32 v{vOff}, 4, v3")
    e(f"  v_and_b32 v2, 15, v3")
    e(f"  v_lshlrev_b32 v2, 4, v2")
    e(f"  s_mul_i32 s3, s{sWave}, {wave_stride}")
    e(f"  v_add_u32 v{vOff}, s3, v{vOff}")
    e(f"  s_mov_b32 s{sC}, {f2u(c):#x}")
    e(f"  s_mov_b32 s{sMask}, 0xffff0000")
    lg = int(math.log2(region))
    e(f"  s_lshr_b32 s4, s2, {32-lg}")
    e(f"  s_lshl_b32 s5, s2, {lg}")
    e(f"  s_lshr_b32 s6, s2, {int(math.log2(split))}")
    e(f"  s_lshl_b32 s6, s6, 8")
    e(f"  s_mov_b32 s{sK+2}, {region:#x}")
    e(f"  s_mov_b32 s{sK+3}, 0x20000")
    e(f"  s_mov_b32 s{sV+2}, {region:#x}")
    e(f"  s_mov_b32 s{sV+3}, 0x20000")
    e(f"  s_mov_b32 s{sQ+2}, 256")
    e(f"  s_mov_b32 s{sQ+3}, 0x20000")
    e(f"  s_mov_b32 s{sO+2}, 256")
    e(f"  s_mov_b32 s{sO+3}, 0x20000")
    if stagger:
        e(f"  s_mul_i32 s7, s2, {stagger * iter_stride}")
        e(f"  s_and_b32 s7, s7, {wrap-1:#x}")
    else:
        e(f"  s_mov_b32 s7, 0")
    for i in range(nchunk):
        e(f"  s_add_u32 s{sOffK+i}, s7, {i*4096}")
        e(f"  s_add_u32 s{sOffV+i}, s7, {i*4096}")
    e("  s_waitcnt lgkmcnt(0)")
    e(f"  s_add_u32 s{sQ}, s44, s6")
    e(f"  s_addc_u32 s{sQ+1}, s45, 0")
    e(f"  s_add_u32 s{sK}, s46, s5")
    e(f"  s_addc_u32 s{sK+1}, s47, s4")
    e(f"  s_add_u32 s{sV}, s48, s5")
    e(f"  s_addc_u32 s{sV+1}, s49, s4")
    e(f"  s_add_u32 s{sO}, s50, s6")
    e(f"  s_addc_u32 s{sO+1}, s51, 0")
    e(f"  buffer_load_dwordx4 v[{vQ}:{vQ+3}], v2, s[{sQ}:{sQ+3}], 0 offen")

    queue = []
    def load(kind, buf, j):
        base = (vK if kind == "K" else vV) + (buf * T + j) * 4
        srd = sK if kind == "K" else sV
        so = (sOffK if kind == "K" else sOffV) + j // 4
        fl = kflags if kind == "K" else vflags
        e(f"  buffer_load_dwordx4 v[{base}:{base+3}], v{vOff}, s[{srd}:{srd+3}], s{so} offen offset:{(j%4)*1024} {fl}")
        queue.append((kind, buf, j))
    def wait(kind, buf, j):
        idx = queue.index((kind, buf, j))
        n = len(queue) - 1 - idx
        assert n <= 63
        e(f"  s_waitcnt vmcnt({n})")
        del queue[:idx + 1]
    def advance(kind):
        so = sOffK if kind == "K" else sOffV
        if stagger:
            e(f"  s_add_u32 s{so}, s{so}, {iter_stride}")
            e(f"  s_and_b32 s{so}, s{so}, {wrap-1:#x}")
            for i in range(1, nchunk):
                e(f"  s_add_u32 s{so+i}, s{so}, {i*4096}")
        else:
            for i in range(nchunk):
                e(f"  s_add_u32 s{so+i}, s{so+i}, {iter_stride}")

    for b in range(DEPTH):
        for j in range(T):
            load("K", b, j)
        advance("K")
        for j in range(T):
            load("V", b, j)
        advance("V")
    e(f"  v_mov_b32 v{vM}, 0xff7fffff")
    e(f"  v_mov_b32 v{vL}, 0")
    for i in range(8):
        e(f"  v_mov_b32 v{vAcc+i}, 0")
    if stamps:
        e(f"  s_waitcnt vmcnt({len(queue)-1})")
        e(f"  s_memrealtime s[{sSt+2}:{sSt+3}]")

    def tile(b, do_loads):
        for g0 in range(0, T, G):
            wait("K", b, g0 + G - 1)
            if compute:
                for d in range(4):
                    for j in range(g0, g0 + G):
                        kr = vK + (b * T + j) * 4 + d
                        src2 = "0" if d == 0 else f"v{vS+j}"
                        e(f"  v_dot2_f32_bf16 v{vS+j}, v{kr}, v{vQ+d}, {src2}")
            else:
                for j in range(g0, g0 + G):
                    kr = vK + (b * T + j) * 4
                    e(f"  v_xor_b32 v{vAcc}, v{kr}, v{vAcc}")
            if do_loads:
                for j in range(g0, g0 + G):
                    load("K", b, j)
        if do_loads:
            advance("K")
        if compute:
            e("  s_nop 2")
            for sh in (8, 4, 2, 1):
                for j in range(T):
                    e(f"  v_add_f32_dpp v{vS+j}, v{vS+j}, v{vS+j} row_ror:{sh} row_mask:0xf bank_mask:0xf")
                if T < 3:
                    e("  s_nop 1")
            if T >= 3:
                e(f"  v_max3_f32 v{vT0}, v{vS}, v{vS+1}, v{vS+2}")
                j = 3
            else:
                e(f"  v_max_f32 v{vT0}, v{vS}, v{vS+1}")
                j = 2
            while j + 1 < T:
                e(f"  v_max3_f32 v{vT0}, v{vT0}, v{vS+j}, v{vS+j+1}")
                j += 2
            if j < T:
                e(f"  v_max_f32 v{vT0}, v{vT0}, v{vS+j}")
            e(f"  v_mul_f32 v{vT0}, s{sC}, v{vT0}")
            e(f"  v_max_f32 v{vT0}, v{vT0}, v{vM}")
            e(f"  v_sub_f32 v{vA}, v{vM}, v{vT0}")
            e(f"  v_mov_b32 v{vM}, v{vT0}")
            e(f"  v_exp_f32 v{vA}, v{vA}")
            for j in range(T):
                e(f"  v_fma_f32 v{vS+j}, v{vS+j}, s{sC}, -v{vM}")
            for j in range(T):
                e(f"  v_exp_f32 v{vS+j}, v{vS+j}")
            for i in range(0, 8, 2):
                e(f"  v_pk_mul_f32 v[{vAcc+i}:{vAcc+i+1}], v[{vAcc+i}:{vAcc+i+1}], v[{vA}:{vA+1}] op_sel_hi:[1,0]")
            e(f"  v_fma_f32 v{vL}, v{vL}, v{vA}, v{vS}")
            for j in range(1, T):
                e(f"  v_add_f32 v{vL}, v{vL}, v{vS+j}")
        for g0 in range(0, T, G):
            wait("V", b, g0 + G - 1)
            for j in range(g0, g0 + G):
                vr = vV + (b * T + j) * 4
                if compute:
                    for d in range(4):
                        e(f"  v_lshlrev_b32 v{vTmp+2*d}, 16, v{vr+d}")
                        e(f"  v_and_b32 v{vTmp+2*d+1}, s{sMask}, v{vr+d}")
                    pj = vS + (j & ~1)
                    sel = j & 1
                    for d in range(4):
                        e(f"  v_pk_fma_f32 v[{vAcc+2*d}:{vAcc+2*d+1}], v[{vTmp+2*d}:{vTmp+2*d+1}], v[{pj}:{pj+1}], v[{vAcc+2*d}:{vAcc+2*d+1}] op_sel:[0,{sel},0] op_sel_hi:[1,{sel},1]")
                else:
                    e(f"  v_xor_b32 v{vAcc}, v{vr}, v{vAcc}")
            if do_loads:
                for j in range(g0, g0 + G):
                    load("V", b, j)
        if do_loads:
            advance("V")

    nloop = (iters - DEPTH) // DEPTH
    if nloop > 0:
        e(f"  s_mov_b32 s{sIter}, {nloop}")
        q0 = list(queue)
        e("L_loop:")
        for b in range(DEPTH):
            tile(b, True)
        assert queue == q0
        if trace:
            e("  s_memrealtime s[68:69]")
            e(f"  s_sub_u32 m0, {nloop}, s{sIter}")
            e("  s_waitcnt lgkmcnt(0)")
            e(f"  v_writelane_b32 v{vTr}, s68, m0")
        e(f"  s_sub_u32 s{sIter}, s{sIter}, 1")
        e(f"  s_cmp_lg_u32 s{sIter}, 0")
        e("  s_cbranch_scc1 L_loop")
    for i in range(nloop * DEPTH, iters):
        tile(i % DEPTH, i + DEPTH < iters)
    assert not queue
    if stamps:
        e(f"  s_memrealtime s[{sSt+4}:{sSt+5}]")

    t, t2 = vTmp, vTmp + 1
    e(f"  v_mov_b32 v{t}, v{vM}")
    e(f"  v_mov_b32 v{t2}, v{vM}")
    e("  s_nop 1")
    e(f"  v_permlane16_swap_b32 v{t}, v{t2}")
    e(f"  s_nop 1")
    e(f"  v_max_f32 v{t}, v{t}, v{t2}")
    e(f"  v_mov_b32 v{t2}, v{t}")
    e("  s_nop 1")
    e(f"  v_permlane32_swap_b32 v{t}, v{t2}")
    e(f"  s_nop 1")
    e(f"  v_max_f32 v{t}, v{t}, v{t2}")
    e(f"  v_sub_f32 v{vA}, v{vM}, v{t}")
    e(f"  v_exp_f32 v{vA}, v{vA}")
    e(f"  v_mov_b32 v{vM}, v{t}")
    e(f"  v_mul_f32 v{vL}, v{vL}, v{vA}")
    for i in range(8):
        e(f"  v_mul_f32 v{vAcc+i}, v{vAcc+i}, v{vA}")
    e(f"  v_mov_b32 v{t2}, v{vL}")
    e("  s_nop 1")
    e(f"  v_permlane16_swap_b32 v{vL}, v{t2}")
    for i in range(4):
        e(f"  v_permlane32_swap_b32 v{vAcc+i}, v{vAcc+i+4}")
    e(f"  v_add_f32 v{vL}, v{vL}, v{t2}")
    for i in range(4):
        e(f"  v_add_f32 v{vAcc+i}, v{vAcc+i}, v{vAcc+i+4}")
    e(f"  v_mov_b32 v{t2}, v{vL}")
    e("  s_nop 1")
    e(f"  v_permlane32_swap_b32 v{vL}, v{t2}")
    e(f"  v_permlane16_swap_b32 v{vAcc}, v{vAcc+2}")
    e(f"  v_permlane16_swap_b32 v{vAcc+1}, v{vAcc+3}")
    e("  s_nop 1")
    e(f"  v_add_f32 v{vL}, v{vL}, v{t2}")
    e(f"  v_add_f32 v{vAcc}, v{vAcc}, v{vAcc+2}")
    e(f"  v_add_f32 v{vAcc+1}, v{vAcc+1}, v{vAcc+3}")
    e(f"  v_and_b32 v2, 15, v3")
    e(f"  v_lshlrev_b32 v2, 5, v2")
    e(f"  v_lshrrev_b32 v{t}, 4, v3")
    e(f"  v_lshl_add_u32 v2, v{t}, 3, v2")
    e(f"  s_lshl_b32 s3, s{sWave}, 9")
    e(f"  v_add_u32 v2, s3, v2")
    e(f"  ds_write_b64 v2, v[{vAcc}:{vAcc+1}]")
    e(f"  s_lshl_b32 s3, s{sWave}, 3")
    e(f"  v_mov_b32 v2, s3")
    e(f"  v_cmp_eq_u32 vcc, 0, v3")
    e(f"  s_and_saveexec_b64 s[4:5], vcc")
    e(f"  ds_write_b64 v2, v[{vM}:{vM+1}] offset:{NW*512}")
    e(f"  s_mov_b64 exec, s[4:5]")
    e("  s_waitcnt lgkmcnt(0)")
    e("  s_barrier")
    e(f"  s_cmp_lg_u32 s{sWave}, 0")
    e("  s_cbranch_scc1 L_end")
    st = vK
    dt = vK + 2 * NW
    e(f"  v_mov_b32 v2, 0")
    e(f"  v_lshlrev_b32 v{t}, 3, v3")
    for w in range(NW):
        e(f"  ds_read_b64 v[{st+2*w}:{st+2*w+1}], v2 offset:{NW*512+w*8}")
    for w in range(NW):
        e(f"  ds_read_b64 v[{dt+2*w}:{dt+2*w+1}], v{t} offset:{w*512}")
    e("  s_waitcnt lgkmcnt(0)")
    if NW > 1:
        e(f"  v_max_f32 v{vM}, v{st}, v{st+2}")
    for w in range(2, NW):
        e(f"  v_max_f32 v{vM}, v{vM}, v{st+2*w}")
    for w in range(NW):
        e(f"  v_sub_f32 v{st+2*w}, v{st+2*w}, v{vM}")
    for w in range(NW):
        e(f"  v_exp_f32 v{st+2*w}, v{st+2*w}")
    e("  s_nop 0")
    e(f"  v_mul_f32 v{vL}, v{st}, v{st+1}")
    e(f"  v_mul_f32 v{vAcc}, v{st}, v{dt}")
    e(f"  v_mul_f32 v{vAcc+1}, v{st}, v{dt+1}")
    for w in range(1, NW):
        e(f"  v_fmac_f32 v{vL}, v{st+2*w}, v{st+2*w+1}")
        e(f"  v_fmac_f32 v{vAcc}, v{st+2*w}, v{dt+2*w}")
        e(f"  v_fmac_f32 v{vAcc+1}, v{st+2*w}, v{dt+2*w+1}")
    e(f"  v_rcp_f32 v{vL}, v{vL}")
    e(f"  v_lshlrev_b32 v2, 2, v3")
    e(f"  v_mul_f32 v{vAcc}, v{vAcc}, v{vL}")
    e(f"  v_mul_f32 v{vAcc+1}, v{vAcc+1}, v{vL}")
    e(f"  v_cvt_pk_bf16_f32 v{vAcc}, v{vAcc}, v{vAcc+1}")
    e(f"  buffer_store_dword v{vAcc}, v2, s[{sO}:{sO+3}], 0 offen")
    if stamps and dstamp:
        e("  s_waitcnt vmcnt(0)")
        e(f"  s_memrealtime s[{sSt+6}:{sSt+7}]")
        e("  s_cmp_ge_u32 s2, 8")
        e("  s_cbranch_scc1 L_end")
        e("  s_waitcnt lgkmcnt(0)")
        e(f"  s_lshl_b32 s3, s2, 2")
        e(f"  v_mov_b32 v2, s3")
        e(f"  v_cmp_eq_u32 vcc, 0, v3")
        e(f"  s_and_saveexec_b64 s[4:5], vcc")
        e(f"  s_sub_u32 s3, s{sSt+6}, s{sSt}")
        e(f"  v_mov_b32 v{vK+5}, s3")
        e(f"  s_sub_u32 s3, s{sSt+2}, s{sSt}")
        e(f"  v_mov_b32 v{vK+6}, s3")
        e(f"  global_store_dword v2, v{vK+5}, s[64:65]")
        e(f"  global_store_dword v2, v{vK+6}, s[64:65] offset:32")
    elif stamps:
        e("  s_waitcnt vmcnt(0)")
        e(f"  s_memrealtime s[{sSt+6}:{sSt+7}]")
        e("  s_getreg_b32 s66, hwreg(HW_REG_HW_ID)")
        e("  s_getreg_b32 s67, hwreg(HW_REG_XCC_ID)")
        e("  s_lshl_b32 s3, s2, 6")
        e("  s_add_u32 s64, s64, s3")
        e("  s_addc_u32 s65, s65, 0")
        e("  s_waitcnt lgkmcnt(0)")
        for i in range(8):
            e(f"  v_mov_b32 v{vK+i}, s{sSt+i}")
        e(f"  v_mov_b32 v{vK+8}, s66")
        e(f"  v_mov_b32 v{vK+9}, s67")
        if trace:
            e(f"  s_mul_i32 s3, s2, 192")
            e(f"  s_add_u32 s3, s3, 0x100000")
            e(f"  v_lshl_add_u32 v2, v3, 2, s3")
            e(f"  global_store_dword v2, v{vTr}, s[64:65]")
        e(f"  v_mov_b32 v2, 0")
        e(f"  v_cmp_eq_u32 vcc, 0, v3")
        e(f"  s_and_saveexec_b64 s[4:5], vcc")
        e(f"  global_store_dwordx4 v2, v[{vK}:{vK+3}], s[64:65]")
        e(f"  global_store_dwordx4 v2, v[{vK+4}:{vK+7}], s[64:65] offset:16")
        e(f"  global_store_dwordx2 v2, v[{vK+8}:{vK+9}], s[64:65] offset:56")
    e("L_end:")
    e("  s_endpgm")
    e('.section .rodata,"a"')
    e(".p2align 6")
    e(f".amdhsa_kernel {NAME}_kernel")
    e(f"  .amdhsa_next_free_vgpr {nv}")
    e(f"  .amdhsa_next_free_sgpr 72")
    e(f"  .amdhsa_accum_offset {(nv+3)//4*4}")
    e("  .amdhsa_group_segment_fixed_size 0")
    e("  .amdhsa_kernarg_size 48")
    e("  .amdhsa_user_sgpr_count 2")
    e("  .amdhsa_user_sgpr_kernarg_segment_ptr 1")
    e("  .amdhsa_system_sgpr_workgroup_id_x 1")
    e(".end_amdhsa_kernel")
    return "\n".join(L) + "\n"

if __name__ == "__main__":
    kw = {}
    out = sys.argv[1]
    for a in sys.argv[2:]:
        k, v = a.split("=", 1)
        if v in ("True", "False"):
            v = v == "True"
        else:
            try:
                v = int(v)
            except ValueError:
                v = v.replace("+", " ")
        kw[k] = v
    open(out, "w").write(gen(**kw))
```

```python
import sys, math, struct
NAME = "standalone__softmax_full_bidir__sampling"
HEADER = """; Decode attention (Sq=1) B=8 H=32 Skv=4096 D=128 bf16: one workgroup per (b,h).
"""
def f2u(x):
    return struct.unpack("<I", struct.pack("<f", x))[0]

def gen(NW=4, CH=4, R=8, G=4, rot=0, flags="nt", stamps=False, perm=0, minv=0):
    L = []; e = L.append
    assert 16 % CH == 0 or CH % 16 == 0
    assert R % G == 0 and 16 % G == 0 and CH % G == 0 or G % CH == 0
    region = 1 << 20
    rowstride = NW * CH * 1024
    loads_per_pass = 1024 // NW
    ngroups = loads_per_pass // 16
    tiles_per_pass = loads_per_pass // CH
    vOff, vLane = 1, 3
    vQ = 4
    vM, vL = 8, 9
    vP, vPn = 10, 11
    vPb = 12
    vLds = 14
    vT0 = 15
    vAcc = 16
    vTmp = 24
    vA = 32
    vR = 48
    nv = max(vR + 4 * R, vR + 4 * NW, minv)
    sK, sV, sQ, sO, sCur = 8, 12, 16, 20, 24
    sOff, sOff2, sCnt = 28, 29, 30
    sC, sMask, sIter, sWave = 40, 41, 42, 43
    sB1, sB0 = 32, 34
    sSt = 56
    c = (128 ** -0.5) * math.log2(math.e)
    S_BYTES = 4096 * 4
    lds_bytes = S_BYTES + NW * 512 + NW * 8

    e(HEADER + f"; @launch grid=(256,1,1) block=({NW*64},1,1) lds={lds_bytes}")
    e('.amdgcn_target "amdgcn-amd-amdhsa--gfx950"\n.text')
    e(f".globl {NAME}_kernel\n.p2align 8\n.type {NAME}_kernel,@function\n{NAME}_kernel:")
    if stamps:
        e(f"  s_memrealtime s[{sSt}:{sSt+1}]")
    e("  s_cmp_ge_u32 s2, 256\n  s_cbranch_scc1 L_end")
    e("  s_load_dwordx8 s[44:51], s[0:1], 0")
    if stamps:
        e("  s_load_dwordx2 s[64:65], s[0:1], 40\n  s_mov_b32 s68, s2")
    if perm == 2:
        e("  s_lshr_b32 s3, s2, 3\n  s_and_b32 s3, s3, 7\n  s_xor_b32 s2, s2, s3")
    e(f"  v_lshrrev_b32 v2, 6, v0\n  v_and_b32 v{vLane}, 63, v0\n  v_readfirstlane_b32 s{sWave}, v2")
    e(f"  v_lshlrev_b32 v{vOff}, 4, v{vLane}")
    e(f"  v_and_b32 v2, 15, v{vLane}\n  v_lshlrev_b32 v2, 4, v2")
    e(f"  s_mul_i32 s3, s{sWave}, {CH*1024}")
    e(f"  v_add_u32 v{vOff}, s3, v{vOff}")
    e(f"  s_lshl_b32 s5, s2, 20\n  s_lshl_b32 s6, s2, 8")
    for s_, n in ((sCur, region), (sQ, 256), (sO, 256)):
        e(f"  s_mov_b32 s{s_+2}, {n:#x}\n  s_mov_b32 s{s_+3}, 0x20000")
    if rot:
        e(f"  s_mul_i32 s{sOff}, s2, {rot*rowstride}\n  s_and_b32 s{sOff}, s{sOff}, {region-1:#x}")
    else:
        e(f"  s_mov_b32 s{sOff}, 0")
    e(f"  s_mov_b32 s{sCnt}, 0")
    e("  s_waitcnt lgkmcnt(0)")
    e(f"  s_add_u32 s{sCur}, s46, s5\n  s_addc_u32 s{sCur+1}, s47, 0")
    e(f"  s_add_u32 s{sQ}, s44, s6\n  s_addc_u32 s{sQ+1}, s45, 0")
    e(f"  buffer_load_dwordx4 v[{vQ}:{vQ+3}], v2, s[{sQ}:{sQ+3}], 0 offen")
    e(f"  s_add_u32 s{sV}, s48, s5\n  s_addc_u32 s{sV+1}, s49, 0")

    st = {"i": 0}
    def nexttile():
        e(f"  s_add_u32 s{sCnt}, s{sCnt}, 1")
        e(f"  s_add_u32 s{sOff}, s{sOff}, {rowstride}\n  s_and_b32 s{sOff}, s{sOff}, {region-1:#x}")
        e(f"  s_cmp_eq_u32 s{sCnt}, {tiles_per_pass}")
        e(f"  s_cselect_b64 s[{sCur}:{sCur+1}], s[{sV}:{sV+1}], s[{sCur}:{sCur+1}]")
        e(f"  s_cmp_ge_u32 s{sCnt}, {2*tiles_per_pass}")
        e(f"  s_cselect_b32 s{sCur+2}, 0, s{sCur+2}")
    def load(slot):
        j = st["i"] % CH
        so = sOff
        if j >= 4:
            if j % 4 == 0:
                e(f"  s_add_u32 s{sOff2}, s{sOff}, {j*1024}")
            so = sOff2
        e(f"  buffer_load_dwordx4 v[{vR+4*slot}:{vR+4*slot+3}], v{vOff}, s[{sCur}:{sCur+3}], s{so} offen offset:{(j%4)*1024} {flags}")
        st["i"] += 1
        if st["i"] % CH == 0:
            nexttile()
    for s_ in range(R):
        load(s_)
    e(f"  s_add_u32 s{sO}, s50, s6\n  s_addc_u32 s{sO+1}, s51, 0")
    e(f"  s_mov_b32 s{sC}, {f2u(c):#x}\n  s_mov_b32 s{sMask}, 0xffff0000")
    e(f"  s_mov_b32 s{sB1}, 0xcccccccc\n  s_mov_b32 s{sB1+1}, 0xcccccccc")
    e(f"  s_mov_b32 s{sB0}, 0xaaaaaaaa\n  s_mov_b32 s{sB0+1}, 0xaaaaaaaa")
    e(f"  s_mul_i32 s3, s{sWave}, {ngroups*256}")
    e(f"  v_lshl_add_u32 v{vLds}, v{vLane}, 2, s3")
    e(f"  v_mov_b32 v{vM}, 0xff7fffff\n  v_mov_b32 v{vL}, 0")
    for i in range(8):
        e(f"  v_mov_b32 v{vAcc+i}, 0")
    if stamps:
        e(f"  s_waitcnt vmcnt({R-1})\n  s_memrealtime s[{sSt+2}:{sSt+3}]")
    body = 16 * R // math.gcd(16, R)
    gpb = body // 16
    assert ngroups % gpb == 0
    DPPF = "row_mask:0xf bank_mask:0xf"
    e(f"  s_mov_b32 s{sIter}, {ngroups // gpb}")
    e("L_kloop:")
    for k in range(0, body, G):
        e(f"  s_waitcnt vmcnt({R-G})")
        for d in range(4):
            for g in range(G):
                a = vA + (k + g) % 16
                kr = vR + 4 * ((k + g) % R) + d
                src2 = "0" if d == 0 else f"v{a}"
                e(f"  v_dot2_f32_bf16 v{a}, v{kr}, v{vQ+d}, {src2}")
        for g in range(G):
            load((k + g) % R)
        if (k + G) % 16 == 0:
            e("  s_nop 1")
            for j in range(8):
                e(f"  v_add_f32_dpp v{vA+j}, v{vA+j}, v{vA+j} row_ror:8 {DPPF}")
            for j in range(8):
                e(f"  v_add_f32_dpp v{vA+j}, v{vA+j+8}, v{vA+j+8} row_ror:8 row_mask:0xf bank_mask:0xc")
            for j in range(4):
                e(f"  v_add_f32_dpp v{vA+j}, v{vA+j}, v{vA+j} row_half_mirror {DPPF}")
            for j in range(4):
                e(f"  v_add_f32_dpp v{vA+j}, v{vA+j+4}, v{vA+j+4} row_half_mirror row_mask:0xf bank_mask:0xa")
            for j in range(4):
                e(f"  v_add_f32_dpp v{vA+j}, v{vA+j}, v{vA+j} quad_perm:[2,3,0,1] {DPPF}")
            e(f"  v_cndmask_b32 v{vA}, v{vA}, v{vA+2}, s[{sB1}:{sB1+1}]")
            e(f"  v_cndmask_b32 v{vA+1}, v{vA+1}, v{vA+3}, s[{sB1}:{sB1+1}]")
            e("  s_nop 0")
            e(f"  v_add_f32_dpp v{vA}, v{vA}, v{vA} quad_perm:[1,0,3,2] {DPPF}")
            e(f"  v_add_f32_dpp v{vA+1}, v{vA+1}, v{vA+1} quad_perm:[1,0,3,2] {DPPF}")
            e(f"  v_cndmask_b32 v{vA}, v{vA}, v{vA+1}, s[{sB0}:{sB0+1}]")
            e(f"  v_mul_f32 v{vT0}, s{sC}, v{vA}")
            e(f"  ds_write_b32 v{vLds}, v{vT0}")
            e(f"  v_max_f32 v{vM}, v{vM}, v{vT0}")
            e(f"  v_add_u32 v{vLds}, 256, v{vLds}")
    e(f"  s_sub_u32 s{sIter}, s{sIter}, 1\n  s_cmp_lg_u32 s{sIter}, 0\n  s_cbranch_scc1 L_kloop")
    e(f"  v_subrev_u32 v{vLds}, {ngroups*256}, v{vLds}")
    e(f"  ds_read_b32 v{vPn}, v{vLds}")
    def allreduce(v, op, t):
        for sh in (8, 4, 2, 1):
            e("  s_nop 1")
            e(f"  v_{op}_f32_dpp v{v}, v{v}, v{v} row_ror:{sh} {DPPF}")
        e(f"  v_mov_b32 v{t}, v{v}\n  s_nop 1\n  v_permlane16_swap_b32 v{v}, v{t}\n  s_nop 1\n  v_{op}_f32 v{v}, v{v}, v{t}")
        e(f"  v_mov_b32 v{t}, v{v}\n  s_nop 1\n  v_permlane32_swap_b32 v{v}, v{t}\n  s_nop 1\n  v_{op}_f32 v{v}, v{v}, v{t}")
    allreduce(vM, "max", vT0)
    e(f"  s_mov_b32 s{sIter}, {ngroups // gpb}")
    e("L_vloop:")
    for k in range(0, body, G):
        if k % 16 == 0:
            e("  s_waitcnt lgkmcnt(0)")
            e(f"  v_sub_f32 v{vP}, v{vPn}, v{vM}")
            e(f"  v_add_u32 v{vLds}, 256, v{vLds}")
            e(f"  v_exp_f32 v{vP}, v{vP}")
            e(f"  ds_read_b32 v{vPn}, v{vLds}")
            e(f"  s_nop 0")
            e(f"  v_add_f32 v{vL}, v{vL}, v{vP}")
        e(f"  s_waitcnt vmcnt({R-G})")
        for g in range(G):
            kk = (k + g) % 16
            vr = vR + 4 * ((k + g) % R)
            sel = kk & 1
            e(f"  v_mov_b32_dpp v{vPb+sel}, v{vP} row_newbcast:{kk} {DPPF}")
            for d in range(4):
                e(f"  v_lshlrev_b32 v{vTmp+2*d}, 16, v{vr+d}")
                e(f"  v_and_b32 v{vTmp+2*d+1}, s{sMask}, v{vr+d}")
            for d in range(4):
                e(f"  v_pk_fma_f32 v[{vAcc+2*d}:{vAcc+2*d+1}], v[{vTmp+2*d}:{vTmp+2*d+1}], v[{vPb}:{vPb+1}], v[{vAcc+2*d}:{vAcc+2*d+1}] op_sel:[0,{sel},0] op_sel_hi:[1,{sel},1]")
        for g in range(G):
            load((k + g) % R)
    e(f"  s_sub_u32 s{sIter}, s{sIter}, 1\n  s_cmp_lg_u32 s{sIter}, 0\n  s_cbranch_scc1 L_vloop")
    if stamps:
        e(f"  s_memrealtime s[{sSt+4}:{sSt+5}]")
    t = vTmp
    for i in range(4):
        e(f"  v_permlane32_swap_b32 v{vAcc+i}, v{vAcc+i+4}")
    e(f"  v_and_b32 v2, 15, v{vLane}\n  v_lshlrev_b32 v2, 5, v2\n  v_lshrrev_b32 v{t}, 4, v{vLane}\n  v_lshl_add_u32 v2, v{t}, 3, v2")
    for i in range(4):
        e(f"  v_add_f32 v{vAcc+i}, v{vAcc+i}, v{vAcc+i+4}")
    e(f"  s_lshl_b32 s3, s{sWave}, 9\n  v_add_u32 v2, s3, v2")
    e(f"  v_permlane16_swap_b32 v{vAcc}, v{vAcc+2}\n  v_permlane16_swap_b32 v{vAcc+1}, v{vAcc+3}")
    e("  s_nop 1")
    e(f"  v_add_f32 v{vAcc}, v{vAcc}, v{vAcc+2}\n  v_add_f32 v{vAcc+1}, v{vAcc+1}, v{vAcc+3}")
    e(f"  ds_write_b64 v2, v[{vAcc}:{vAcc+1}] offset:{S_BYTES}")
    allreduce(vL, "add", vT0)
    e(f"  s_lshl_b32 s3, s{sWave}, 3\n  v_mov_b32 v2, s3")
    e(f"  v_cmp_eq_u32 vcc, 0, v{vLane}\n  s_and_saveexec_b64 s[4:5], vcc")
    e(f"  ds_write_b64 v2, v[{vM}:{vM+1}] offset:{S_BYTES+NW*512}")
    e(f"  s_mov_b64 exec, s[4:5]")
    e("  s_waitcnt lgkmcnt(0)\n  s_barrier")
    e(f"  s_cmp_lg_u32 s{sWave}, 0\n  s_cbranch_scc1 L_end")
    if 4 * NW <= 24:
        stt = vTmp; dt = vTmp + 2 * NW
    else:
        e("  s_waitcnt vmcnt(0)")
        stt = vR; dt = vR + 2 * NW
    e(f"  v_mov_b32 v2, 0\n  v_lshlrev_b32 v{vT0}, 3, v{vLane}")
    for w in range(0, NW, 2):
        e(f"  ds_read_b128 v[{stt+2*w}:{stt+2*w+3}], v2 offset:{S_BYTES+NW*512+w*8}")
    for w in range(NW):
        e(f"  ds_read_b64 v[{dt+2*w}:{dt+2*w+1}], v{vT0} offset:{S_BYTES+w*512}")
    e(f"  s_waitcnt lgkmcnt({min(NW,15)})")
    e(f"  v_max_f32 v{vM}, v{stt}, v{stt+2}")
    for w in range(2, NW):
        e(f"  v_max_f32 v{vM}, v{vM}, v{stt+2*w}")
    for w in range(NW):
        e(f"  v_sub_f32 v{stt+2*w}, v{stt+2*w}, v{vM}")
    for w in range(NW):
        e(f"  v_exp_f32 v{stt+2*w}, v{stt+2*w}")
    e("  s_nop 0")
    e(f"  v_mul_f32 v{vL}, v{stt}, v{stt+1}")
    for w in range(1, NW):
        e(f"  v_fmac_f32 v{vL}, v{stt+2*w}, v{stt+2*w+1}")
    e(f"  v_rcp_f32 v{vL}, v{vL}")
    e("  s_waitcnt lgkmcnt(0)")
    e(f"  v_mul_f32 v{vAcc}, v{stt}, v{dt}\n  v_mul_f32 v{vAcc+1}, v{stt}, v{dt+1}")
    for w in range(1, NW):
        e(f"  v_fmac_f32 v{vAcc}, v{stt+2*w}, v{dt+2*w}\n  v_fmac_f32 v{vAcc+1}, v{stt+2*w}, v{dt+2*w+1}")
    e(f"  v_lshlrev_b32 v2, 2, v{vLane}")
    e(f"  v_mul_f32 v{vAcc}, v{vAcc}, v{vL}\n  v_mul_f32 v{vAcc+1}, v{vAcc+1}, v{vL}")
    e(f"  v_cvt_pk_bf16_f32 v{vAcc}, v{vAcc}, v{vAcc+1}")
    e(f"  buffer_store_dword v{vAcc}, v2, s[{sO}:{sO+3}], 0 offen")
    if stamps:
        b = vA
        e(f"  s_waitcnt vmcnt(0)\n  s_memrealtime s[{sSt+6}:{sSt+7}]")
        e("  s_getreg_b32 s66, hwreg(HW_REG_HW_ID)\n  s_getreg_b32 s67, hwreg(HW_REG_XCC_ID)")
        e("  s_lshl_b32 s3, s68, 6\n  s_add_u32 s64, s64, s3\n  s_addc_u32 s65, s65, 0\n  s_waitcnt lgkmcnt(0)")
        for i in range(8):
            e(f"  v_mov_b32 v{b+i}, s{sSt+i}")
        e(f"  v_mov_b32 v{b+8}, s66\n  v_mov_b32 v{b+9}, s67\n  v_mov_b32 v2, 0")
        e(f"  v_cmp_eq_u32 vcc, 0, v{vLane}\n  s_and_saveexec_b64 s[4:5], vcc")
        e(f"  global_store_dwordx4 v2, v[{b}:{b+3}], s[64:65]\n  global_store_dwordx4 v2, v[{b+4}:{b+7}], s[64:65] offset:16\n  global_store_dwordx2 v2, v[{b+8}:{b+9}], s[64:65] offset:56")
    e("L_end:\n  s_endpgm")
    e('.section .rodata,"a"\n.p2align 6')
    e(f".amdhsa_kernel {NAME}_kernel\n  .amdhsa_next_free_vgpr {nv}\n  .amdhsa_next_free_sgpr 72\n  .amdhsa_accum_offset {(nv+3)//4*4}")
    e("  .amdhsa_group_segment_fixed_size 0\n  .amdhsa_kernarg_size 48\n  .amdhsa_user_sgpr_count 2\n  .amdhsa_user_sgpr_kernarg_segment_ptr 1\n  .amdhsa_system_sgpr_workgroup_id_x 1\n.end_amdhsa_kernel")
    return "\n".join(L) + "\n"

if __name__ == "__main__":
    kw = {}
    for a in sys.argv[2:]:
        k, v = a.split("=", 1)
        if v in ("True", "False"): v = v == "True"
        else:
            try: v = int(v)
            except ValueError: v = v.replace("+", " ")
        kw[k] = v
    open(sys.argv[1], "w").write(gen(**kw))
```

```python
import sys, math, struct
NAME = "standalone__softmax_full_bidir__sampling"
HEADER = """; Decode attention (Sq=1) B=8 H=32 Skv=4096 D=128 bf16: one workgroup per (b,h).
"""
def f2u(x):
    return struct.unpack("<I", struct.pack("<f", x))[0]
def bitrev4(x):
    return ((x & 1) << 3) | ((x & 2) << 1) | ((x & 4) >> 1) | ((x & 8) >> 3)

def gen(NW=4, CH=4, R=8, W=5, WV=0, rot=0, flags="nt", stamps=False, P0=0, minv=0, dstamp=False):
    L = []; e = L.append
    WV = WV or W
    assert R in (8, 16, 32) and W < R and WV < R
    region = 1 << 20
    rowstride = NW * CH * 1024
    loads_per_pass = 1024 // NW
    ngroups = loads_per_pass // 16
    tiles_per_pass = loads_per_pass // CH
    vOff, vLane = 1, 3
    vQ = 4
    vM, vL = 8, 9
    vP, vPn = 10, 11
    vPb = 12
    vLds, vT0 = 14, 15
    vAcc = 16
    vTmp = 24
    vA, vB, vC, vD = 24, 26, 28, 30
    vR = 32
    nv = max(vR + 4 * R, vR + 4 * NW, minv)
    sV, sQ, sO, sCur = 12, 16, 20, 24
    sOff, sOff2, sCnt = 28, 29, 30
    sC, sMask, sIter, sWave = 40, 41, 42, 43
    sB1, sB0 = 32, 34
    sSt = 56
    c = (128 ** -0.5) * math.log2(math.e)
    S_BYTES = 4096 * 4
    lds_bytes = S_BYTES + NW * 512 + NW * 8
    DPPF = "row_mask:0xf bank_mask:0xf"

    e(HEADER + f"; @launch grid=(256,1,1) block=({NW*64},1,1) lds={lds_bytes}")
    e('.amdgcn_target "amdgcn-amd-amdhsa--gfx950"\n.text')
    e(f".globl {NAME}_kernel\n.p2align 8\n.type {NAME}_kernel,@function\n{NAME}_kernel:")
    if stamps:
        e(f"  s_memrealtime s[{sSt}:{sSt+1}]")
    e("  s_load_dwordx8 s[44:51], s[0:1], 0")
    e("  s_cmp_ge_u32 s2, 256\n  s_cbranch_scc1 L_end")
    if stamps:
        e(f"  s_load_dwordx2 s[64:65], s[0:1], {32 if dstamp else 40}\n  s_mov_b32 s68, s2")
    e(f"  v_lshrrev_b32 v2, 6, v0\n  v_and_b32 v{vLane}, 63, v0\n  v_readfirstlane_b32 s{sWave}, v2")
    e(f"  v_lshlrev_b32 v{vOff}, 4, v{vLane}")
    e(f"  v_and_b32 v2, 15, v{vLane}\n  v_lshlrev_b32 v2, 4, v2")
    e(f"  s_mul_i32 s3, s{sWave}, {CH*1024}")
    e(f"  v_add_u32 v{vOff}, s3, v{vOff}")
    e(f"  s_lshl_b32 s5, s2, 20\n  s_lshl_b32 s6, s2, 8")
    for s_, n in ((sCur, region), (sQ, 256), (sO, 256)):
        e(f"  s_mov_b32 s{s_+2}, {n:#x}\n  s_mov_b32 s{s_+3}, 0x20000")
    if rot:
        e(f"  s_mul_i32 s{sOff}, s2, {rot*rowstride}\n  s_and_b32 s{sOff}, s{sOff}, {region-1:#x}")
    else:
        e(f"  s_mov_b32 s{sOff}, 0")
    e(f"  s_mov_b32 s{sCnt}, 0")
    e("  s_waitcnt lgkmcnt(0)")
    e(f"  s_add_u32 s{sCur}, s46, s5\n  s_addc_u32 s{sCur+1}, s47, 0")
    e(f"  s_add_u32 s{sQ}, s44, s6\n  s_addc_u32 s{sQ+1}, s45, 0")
    e(f"  s_add_u32 s{sV}, s48, s5\n  s_addc_u32 s{sV+1}, s49, 0")

    st = {"i": 0}
    def nexttile():
        e(f"  s_add_u32 s{sCnt}, s{sCnt}, 1")
        e(f"  s_add_u32 s{sOff}, s{sOff}, {rowstride}\n  s_and_b32 s{sOff}, s{sOff}, {region-1:#x}")
        e(f"  s_cmp_eq_u32 s{sCnt}, {tiles_per_pass}")
        e(f"  s_cselect_b64 s[{sCur}:{sCur+1}], s[{sV}:{sV+1}], s[{sCur}:{sCur+1}]")
        e(f"  s_cmp_ge_u32 s{sCnt}, {2*tiles_per_pass}")
        e(f"  s_cselect_b32 s{sCur+2}, 0, s{sCur+2}")
    def load():
        slot = st["i"] % R
        j = st["i"] % CH
        so = sOff
        if j >= 4:
            if j % 4 == 0:
                e(f"  s_add_u32 s{sOff2}, s{sOff}, {j*1024}")
            so = sOff2
        e(f"  buffer_load_dwordx4 v[{vR+4*slot}:{vR+4*slot+3}], v{vOff}, s[{sCur}:{sCur+3}], s{so} offen offset:{(j%4)*1024} {flags}")
        st["i"] += 1
        if st["i"] % CH == 0:
            nexttile()
    load()
    e(f"  buffer_load_dwordx4 v[{vQ}:{vQ+3}], v2, s[{sQ}:{sQ+3}], 0 offen")
    P0 = P0 or (R - 1)
    for _ in range(P0 - 1):
        load()
    e(f"  s_add_u32 s{sO}, s50, s6\n  s_addc_u32 s{sO+1}, s51, 0")
    e(f"  s_mov_b32 s{sC}, {f2u(c):#x}\n  s_mov_b32 s{sMask}, 0xffff0000")
    e(f"  s_mov_b32 s{sB1}, 0xcccccccc\n  s_mov_b32 s{sB1+1}, 0xcccccccc")
    e(f"  s_mov_b32 s{sB0}, 0xaaaaaaaa\n  s_mov_b32 s{sB0+1}, 0xaaaaaaaa")
    e(f"  s_mul_i32 s3, s{sWave}, {ngroups*256}")
    e(f"  v_lshl_add_u32 v{vLds}, v{vLane}, 2, s3")
    e(f"  v_mov_b32 v{vM}, 0xff7fffff\n  v_mov_b32 v{vL}, 0")
    for i in range(8):
        e(f"  v_mov_b32 v{vAcc+i}, 0")
    for i in range(P0, R - 1):
        e(f"  s_waitcnt vmcnt({W-1})")
        load()
    if stamps:
        e(f"  s_waitcnt vmcnt({R-2})\n  s_memrealtime s[{sSt+2}:{sSt+3}]")
    body = max(16, R)
    gpb = body // 16
    def lvl1(j):
        e(f"  v_add_f32_dpp v{vB+j}, v{vA}, v{vA} row_ror:8 {DPPF}")
        e(f"  v_add_f32_dpp v{vB+j}, v{vA+1}, v{vA+1} row_ror:8 row_mask:0xf bank_mask:0xc")
    def lvl2(j):
        e(f"  v_add_f32_dpp v{vC+j}, v{vB}, v{vB} row_half_mirror {DPPF}")
        e(f"  v_add_f32_dpp v{vC+j}, v{vB+1}, v{vB+1} row_half_mirror row_mask:0xf bank_mask:0xa")
    def lvl3(j):
        e(f"  v_add_f32_dpp v{vC}, v{vC}, v{vC} quad_perm:[2,3,0,1] {DPPF}")
        e(f"  v_add_f32_dpp v{vC+1}, v{vC+1}, v{vC+1} quad_perm:[2,3,0,1] {DPPF}")
        e(f"  v_cndmask_b32 v{vD+j}, v{vC}, v{vC+1}, s[{sB1}:{sB1+1}]")
    def lvl4():
        e(f"  v_add_f32_dpp v{vD}, v{vD}, v{vD} quad_perm:[1,0,3,2] {DPPF}")
        e(f"  v_add_f32_dpp v{vD+1}, v{vD+1}, v{vD+1} quad_perm:[1,0,3,2] {DPPF}")
        e(f"  v_cndmask_b32 v{vT0}, v{vD}, v{vD+1}, s[{sB0}:{sB0+1}]")
    def combine_after(kk):
        if kk % 2 == 1:
            lvl1((kk >> 1) & 1)
        if kk % 4 == 3:
            e("  s_nop 1"); lvl2((kk >> 2) & 1)
        if kk % 8 == 7:
            e("  s_nop 1"); lvl3((kk >> 3) & 1)
        if kk == 15:
            e("  s_nop 1"); lvl4()
            e(f"  v_mul_f32 v{vT0}, s{sC}, v{vT0}")
            e(f"  ds_write_b32 v{vLds}, v{vT0}")
            e(f"  v_max_f32 v{vM}, v{vM}, v{vT0}")
            e(f"  v_add_u32 v{vLds}, 256, v{vLds}")
    e(f"  s_mov_b32 s{sIter}, {ngroups // gpb}")
    e("L_kloop:")
    for k in range(body):
        kk = k % 16
        e(f"  s_waitcnt vmcnt({W-1})")
        load()
        if kk > 0 and (kk - 1) % 2 == 1:
            e("  s_nop 0")
            combine_after(kk - 1)
        a = vA + (kk & 1)
        for d in range(4):
            src2 = "0" if d == 0 else f"v{a}"
            e(f"  v_dot2_f32_bf16 v{a}, v{vR+4*(k%R)+d}, v{vQ+d}, {src2}")
        if kk == 15:
            e("  s_nop 2")
            combine_after(15)
    e(f"  s_sub_u32 s{sIter}, s{sIter}, 1\n  s_cmp_lg_u32 s{sIter}, 0\n  s_cbranch_scc1 L_kloop")
    e(f"  v_subrev_u32 v{vLds}, {ngroups*256}, v{vLds}")
    e(f"  ds_read_b32 v{vPn}, v{vLds}")
    def allreduce(v, op, t):
        for sh in (8, 4, 2, 1):
            e("  s_nop 1")
            e(f"  v_{op}_f32_dpp v{v}, v{v}, v{v} row_ror:{sh} {DPPF}")
        e(f"  v_mov_b32 v{t}, v{v}\n  s_nop 1\n  v_permlane16_swap_b32 v{v}, v{t}\n  s_nop 1\n  v_{op}_f32 v{v}, v{v}, v{t}")
        e(f"  v_mov_b32 v{t}, v{v}\n  s_nop 1\n  v_permlane32_swap_b32 v{v}, v{t}\n  s_nop 1\n  v_{op}_f32 v{v}, v{v}, v{t}")
    allreduce(vM, "max", vT0)
    e(f"  s_mov_b32 s{sIter}, {ngroups // gpb}")
    e("L_vloop:")
    for k in range(body):
        kk = k % 16
        e(f"  s_waitcnt vmcnt({WV-1})")
        load()
        if kk == 0:
            e("  s_waitcnt lgkmcnt(0)")
            e(f"  v_sub_f32 v{vP}, v{vPn}, v{vM}")
            e(f"  v_add_u32 v{vLds}, 256, v{vLds}")
            e(f"  v_exp_f32 v{vP}, v{vP}")
            e(f"  ds_read_b32 v{vPn}, v{vLds}")
            e(f"  s_nop 0")
            e(f"  v_add_f32 v{vL}, v{vL}, v{vP}")
        vr = vR + 4 * (k % R)
        sel = kk & 1
        e(f"  v_mov_b32_dpp v{vPb+sel}, v{vP} row_newbcast:{bitrev4(kk)} {DPPF}")
        for d in range(4):
            e(f"  v_lshlrev_b32 v{vTmp+2*d}, 16, v{vr+d}")
            e(f"  v_and_b32 v{vTmp+2*d+1}, s{sMask}, v{vr+d}")
        for d in range(4):
            e(f"  v_pk_fma_f32 v[{vAcc+2*d}:{vAcc+2*d+1}], v[{vTmp+2*d}:{vTmp+2*d+1}], v[{vPb}:{vPb+1}], v[{vAcc+2*d}:{vAcc+2*d+1}] op_sel:[0,{sel},0] op_sel_hi:[1,{sel},1]")
    e(f"  s_sub_u32 s{sIter}, s{sIter}, 1\n  s_cmp_lg_u32 s{sIter}, 0\n  s_cbranch_scc1 L_vloop")
    if stamps:
        e(f"  s_memrealtime s[{sSt+4}:{sSt+5}]")
    t = vTmp
    for i in range(4):
        e(f"  v_permlane32_swap_b32 v{vAcc+i}, v{vAcc+i+4}")
    e(f"  v_and_b32 v2, 15, v{vLane}\n  v_lshlrev_b32 v2, 5, v2\n  v_lshrrev_b32 v{t}, 4, v{vLane}\n  v_lshl_add_u32 v2, v{t}, 3, v2")
    for i in range(4):
        e(f"  v_add_f32 v{vAcc+i}, v{vAcc+i}, v{vAcc+i+4}")
    e(f"  s_lshl_b32 s3, s{sWave}, 9\n  v_add_u32 v2, s3, v2")
    e(f"  v_permlane16_swap_b32 v{vAcc}, v{vAcc+2}\n  v_permlane16_swap_b32 v{vAcc+1}, v{vAcc+3}")
    e("  s_nop 1")
    e(f"  v_add_f32 v{vAcc}, v{vAcc}, v{vAcc+2}\n  v_add_f32 v{vAcc+1}, v{vAcc+1}, v{vAcc+3}")
    e(f"  ds_write_b64 v2, v[{vAcc}:{vAcc+1}] offset:{S_BYTES}")
    allreduce(vL, "add", vT0)
    e(f"  s_lshl_b32 s3, s{sWave}, 3\n  v_mov_b32 v2, s3")
    e(f"  v_cmp_eq_u32 vcc, 0, v{vLane}\n  s_and_saveexec_b64 s[4:5], vcc")
    e(f"  ds_write_b64 v2, v[{vM}:{vM+1}] offset:{S_BYTES+NW*512}")
    e(f"  s_mov_b64 exec, s[4:5]")
    e("  s_waitcnt lgkmcnt(0)\n  s_barrier")
    e(f"  s_cmp_lg_u32 s{sWave}, 0\n  s_cbranch_scc1 L_end")
    e("  s_waitcnt vmcnt(0)")
    stt = vR; dt = vR + 2 * NW
    e(f"  v_mov_b32 v2, 0\n  v_lshlrev_b32 v{vT0}, 3, v{vLane}")
    if NW == 1:
        e(f"  ds_read_b64 v[{stt}:{stt+1}], v2 offset:{S_BYTES+NW*512}")
    for w in range(0, NW - 1, 2):
        e(f"  ds_read_b128 v[{stt+2*w}:{stt+2*w+3}], v2 offset:{S_BYTES+NW*512+w*8}")
    for w in range(NW):
        e(f"  ds_read_b64 v[{dt+2*w}:{dt+2*w+1}], v{vT0} offset:{S_BYTES+w*512}")
    e(f"  s_waitcnt lgkmcnt({min(NW,15)})")
    if NW > 1:
        e(f"  v_max_f32 v{vM}, v{stt}, v{stt+2}")
    for w in range(2, NW):
        e(f"  v_max_f32 v{vM}, v{vM}, v{stt+2*w}")
    for w in range(NW):
        e(f"  v_sub_f32 v{stt+2*w}, v{stt+2*w}, v{vM}")
    for w in range(NW):
        e(f"  v_exp_f32 v{stt+2*w}, v{stt+2*w}")
    e("  s_nop 0")
    e(f"  v_mul_f32 v{vL}, v{stt}, v{stt+1}")
    for w in range(1, NW):
        e(f"  v_fmac_f32 v{vL}, v{stt+2*w}, v{stt+2*w+1}")
    e(f"  v_rcp_f32 v{vL}, v{vL}")
    e("  s_waitcnt lgkmcnt(0)")
    e(f"  v_mul_f32 v{vAcc}, v{stt}, v{dt}\n  v_mul_f32 v{vAcc+1}, v{stt}, v{dt+1}")
    for w in range(1, NW):
        e(f"  v_fmac_f32 v{vAcc}, v{stt+2*w}, v{dt+2*w}\n  v_fmac_f32 v{vAcc+1}, v{stt+2*w}, v{dt+2*w+1}")
    e(f"  v_lshlrev_b32 v2, 2, v{vLane}")
    e(f"  v_mul_f32 v{vAcc}, v{vAcc}, v{vL}\n  v_mul_f32 v{vAcc+1}, v{vAcc+1}, v{vL}")
    e(f"  v_cvt_pk_bf16_f32 v{vAcc}, v{vAcc}, v{vAcc+1}")
    e(f"  buffer_store_dword v{vAcc}, v2, s[{sO}:{sO+3}], 0 offen")
    if stamps:
        b = vR + 16
        e(f"  s_waitcnt vmcnt(0)\n  s_memrealtime s[{sSt+6}:{sSt+7}]")
        e("  s_getreg_b32 s66, hwreg(HW_REG_HW_ID)\n  s_getreg_b32 s67, hwreg(HW_REG_XCC_ID)")
        e("  s_lshl_b32 s3, s68, 6\n  s_add_u32 s64, s64, s3\n  s_addc_u32 s65, s65, 0\n  s_waitcnt lgkmcnt(0)")
        for i in range(8):
            e(f"  v_mov_b32 v{b+i}, s{sSt+i}")
        e(f"  v_mov_b32 v{b+8}, s66\n  v_mov_b32 v{b+9}, s67\n  v_mov_b32 v2, 0")
        e(f"  v_cmp_eq_u32 vcc, 0, v{vLane}\n  s_and_saveexec_b64 s[4:5], vcc")
        e(f"  global_store_dwordx4 v2, v[{b}:{b+3}], s[64:65]\n  global_store_dwordx4 v2, v[{b+4}:{b+7}], s[64:65] offset:16\n  global_store_dwordx2 v2, v[{b+8}:{b+9}], s[64:65] offset:56")
    e("L_end:\n  s_endpgm")
    e('.section .rodata,"a"\n.p2align 6')
    e(f".amdhsa_kernel {NAME}_kernel\n  .amdhsa_next_free_vgpr {nv}\n  .amdhsa_next_free_sgpr 72\n  .amdhsa_accum_offset {(nv+3)//4*4}")
    e("  .amdhsa_group_segment_fixed_size 0\n  .amdhsa_kernarg_size 48\n  .amdhsa_user_sgpr_count 2\n  .amdhsa_user_sgpr_kernarg_segment_ptr 1\n  .amdhsa_system_sgpr_workgroup_id_x 1\n.end_amdhsa_kernel")
    return "\n".join(L) + "\n"

if __name__ == "__main__":
    kw = {}
    for a in sys.argv[2:]:
        k, v = a.split("=", 1)
        if v in ("True", "False"): v = v == "True"
        else:
            try: v = int(v)
            except ValueError: v = v.replace("+", " ")
        kw[k] = v
    open(sys.argv[1], "w").write(gen(**kw))
```

```python
import sys, math, struct
NAME = "standalone__softmax_full_bidir__sampling"
HEADER = """; Decode attention (Sq=1) B=8 H=32 Skv=4096 D=128 bf16: one workgroup (4 waves) per (b,h).
"""
def f2u(x):
    return struct.unpack("<I", struct.pack("<f", x))[0]
def bitrev4(x):
    return ((x & 1) << 3) | ((x & 2) << 1) | ((x & 4) >> 1) | ((x & 8) >> 3)

def gen(b0=13, b1=15, ctl=True, Whi=7, Wmid=5, Wlo=4, ta=-30, tb=30, U=54, PP=4, flags="nt", stamps=False,
        nrep=8, trace=False, evalstep=8, NC=64, CS=256, WSOFF=0x200000, win=2000, nopub=False, nopoll=False, defer=0, pubP=1, pubflags='sc1', pollflags='sc1', pubmode='store', spread=False, usedbg=False, stag=0, pubs='', polld=1, pollspread=2):
    L = []; e = L.append
    NW, R = 4, 8
    region = 1 << 20
    ngroups = 16
    rest = [b for b in range(10, 20) if b not in (b0, b1)]
    assert rest[:2] == [10, 11]
    t2 = rest[2]
    holes = (1 << b0) | (1 << b1) | (1 << t2) | 0xfff
    vOff, vLane = 1, 3
    vQ = 4
    vM, vL = 8, 9
    vP, vPn = 10, 11
    vPb = 12
    vLds, vT0 = 14, 15
    vAcc = 16
    vTmp = 24
    vA, vB, vC, vD = 24, 26, 28, 30
    vR = 32
    vPoll, vPollA, vPubA, vTr, vX = 64, 65, 66, 67, 68
    nv = 72
    sV, sQ, sO, sCur, sDb = 12, 16, 20, 24, 36
    sOff, sOff2, sCnt = 28, 29, 30
    sC, sMask, sIter, sWave = 40, 41, 42, 43
    sB1, sB0 = 32, 34
    sLvl, sVT, sK, sHave, sPhi, sRep, sPend, sT = 52, 53, 54, 55, 70, 71, 72, 74
    sSt = 56
    c = (128 ** -0.5) * math.log2(math.e)
    S_BYTES = 4096 * 4
    lds_bytes = S_BYTES + NW * 512 + NW * 8
    DPPF = "row_mask:0xf bank_mask:0xf"
    lab = {"n": 0}
    def newlab():
        lab["n"] += 1
        return f"L_{lab['n']}"

    e(HEADER + f"; @launch grid=(256,1,1) block=(256,1,1) lds={lds_bytes}")
    e('.amdgcn_target "amdgcn-amd-amdhsa--gfx950"\n.text')
    e(f".globl {NAME}_kernel\n.p2align 8\n.type {NAME}_kernel,@function\n{NAME}_kernel:")
    if stamps:
        e(f"  s_memrealtime s[{sSt}:{sSt+1}]")
    e("  s_load_dwordx8 s[44:51], s[0:1], 0")
    e("  s_cmp_ge_u32 s2, 256\n  s_cbranch_scc1 L_end")
    if ctl:
        e(f"  s_load_dwordx2 s[{sDb}:{sDb+1}], s[0:1], {32 if usedbg else 40}")
    if stamps:
        e(f"  s_load_dwordx2 s[64:65], s[0:1], 40\n  s_mov_b32 s68, s2")
    e(f"  v_lshrrev_b32 v2, 6, v0\n  v_and_b32 v{vLane}, 63, v0\n  v_readfirstlane_b32 s{sWave}, v2")
    e(f"  v_lshlrev_b32 v{vOff}, 4, v{vLane}")
    e(f"  v_and_b32 v2, 15, v{vLane}\n  v_lshlrev_b32 v2, 4, v2")
    e(f"  s_and_b32 s3, s{sWave}, 1\n  s_lshl_b32 s3, s3, {b0}\n  s_lshr_b32 s4, s{sWave}, 1\n  s_lshl_b32 s4, s4, {b1}\n  s_or_b32 s3, s3, s4")
    e(f"  v_add_u32 v{vOff}, s3, v{vOff}")
    e(f"  s_lshl_b32 s5, s2, 20\n  s_lshl_b32 s6, s2, 8")
    for s_, n in ((sCur, region), (sQ, 256), (sO, 256)):
        e(f"  s_mov_b32 s{s_+2}, {n:#x}\n  s_mov_b32 s{s_+3}, 0x20000")
    e(f"  s_mov_b32 s{sOff}, 0\n  s_mov_b32 s{sOff2}, {1<<t2:#x}\n  s_mov_b32 s{sCnt}, 0")
    e("  s_waitcnt lgkmcnt(0)")
    e(f"  s_add_u32 s{sCur}, s46, s5\n  s_addc_u32 s{sCur+1}, s47, 0")
    e(f"  s_add_u32 s{sQ}, s44, s6\n  s_addc_u32 s{sQ+1}, s45, 0")
    e(f"  s_add_u32 s{sV}, s48, s5\n  s_addc_u32 s{sV+1}, s49, 0")

    st = {"i": 0}
    def nexttile():
        e(f"  s_or_b32 s{sOff}, s{sOff}, {holes:#x}\n  s_add_u32 s{sOff}, s{sOff}, 1\n  s_and_b32 s{sOff}, s{sOff}, {(region-1) & ~holes:#x}")
        e(f"  s_or_b32 s{sOff2}, s{sOff}, {1<<t2:#x}")
        e(f"  s_add_u32 s{sCnt}, s{sCnt}, 1")
        e(f"  s_cmp_eq_u32 s{sCnt}, 32")
        e(f"  s_cselect_b64 s[{sCur}:{sCur+1}], s[{sV}:{sV+1}], s[{sCur}:{sCur+1}]")
        e(f"  s_cmp_ge_u32 s{sCnt}, 64")
        e(f"  s_cselect_b32 s{sCur+2}, 0, s{sCur+2}")
    def load():
        slot = st["i"] % R
        so = sOff if slot < 4 else sOff2
        e(f"  buffer_load_dwordx4 v[{vR+4*slot}:{vR+4*slot+3}], v{vOff}, s[{sCur}:{sCur+3}], s{so} offen offset:{(slot%4)*1024} {flags}")
        st["i"] += 1
        if st["i"] % R == 0:
            nexttile()
    load()
    e(f"  buffer_load_dwordx4 v[{vQ}:{vQ+3}], v2, s[{sQ}:{sQ+3}], 0 offen")
    for _ in range(R - 2):
        load()
    e(f"  s_add_u32 s{sO}, s50, s6\n  s_addc_u32 s{sO+1}, s51, 0")
    e(f"  s_mov_b32 s{sC}, {f2u(c):#x}\n  s_mov_b32 s{sMask}, 0xffff0000")
    e(f"  s_mov_b32 s{sB1}, 0xcccccccc\n  s_mov_b32 s{sB1+1}, 0xcccccccc")
    e(f"  s_mov_b32 s{sB0}, 0xaaaaaaaa\n  s_mov_b32 s{sB0+1}, 0xaaaaaaaa")
    e(f"  s_mul_i32 s3, s{sWave}, {ngroups*256}")
    e(f"  v_lshl_add_u32 v{vLds}, v{vLane}, 2, s3")
    e(f"  v_mov_b32 v{vM}, 0xff7fffff\n  v_mov_b32 v{vL}, 0")
    for i in range(8):
        e(f"  v_mov_b32 v{vAcc+i}, 0")
    if ctl:
        if not usedbg:
            e(f"  s_add_u32 s{sDb}, s{sDb}, {WSOFF:#x}\n  s_addc_u32 s{sDb+1}, s{sDb+1}, 0")
        nbytes = NC * CS * (nrep if spread else 1)
        e(f"  s_mov_b32 s{sDb+2}, {nbytes}\n  s_mov_b32 s{sDb+3}, 0x20000")
        e(f"  s_mov_b32 s{sLvl}, 1\n  s_mov_b32 s{sVT}, 0\n  s_mov_b32 s{sK}, 0\n  s_mov_b32 s{sHave}, 0\n  s_mov_b32 s{sPend}, 0\n  s_mov_b32 s{sPhi}, 0")
        rs = CS if spread else 4
        cs = CS * nrep if spread else CS
        e(f"  v_and_b32 v{vPollA}, {nrep-1}, v{vLane}\n  v_mul_u32_u24 v{vPollA}, {rs}, v{vPollA}")
        e(f"  s_lshr_b32 s3, s2, 3\n  s_and_b32 s3, s3, {NC-1}\n  s_mul_i32 s3, s3, {cs}\n  v_add_u32 v{vPollA}, s3, v{vPollA}")
        if pubmode == 'line':
            assert spread and NC <= 8
            e(f"  v_lshrrev_b32 v{vPubA}, 3, v{vLane}\n  v_mul_u32_u24 v{vPubA}, {cs}, v{vPubA}")
            e(f"  v_and_b32 v{vX}, 7, v{vLane}\n  v_lshl_add_u32 v{vPubA}, v{vX}, 4, v{vPubA}")
        else:
            e(f"  v_mul_u32_u24 v{vPubA}, {cs}, v{vLane}")
        e(f"  s_mul_i32 s3, s2, {rs}\n  v_add_u32 v{vPubA}, s3, v{vPubA}")
        e(f"  s_cmp_lt_u32 s2, {nrep}\n  s_cselect_b32 s{sRep}, 1, 0\n  s_cmp_eq_u32 s{sWave}, 0\n  s_cselect_b32 s{sRep}, s{sRep}, 0")
    if stamps:
        e(f"  s_waitcnt vmcnt({R-2})\n  s_memrealtime s[{sSt+2}:{sSt+3}]")

    def waits():
        if not ctl:
            e(f"  s_waitcnt vmcnt({Wmid-1})")
            return
        a, b = newlab(), newlab()
        e(f"  s_cmp_eq_u32 s{sLvl}, 0\n  s_cbranch_scc1 {a}\n  s_cmp_eq_u32 s{sLvl}, 1\n  s_cbranch_scc1 {b}")
        e(f"  s_waitcnt vmcnt({Wlo-1})\n{b}:\n  s_waitcnt vmcnt({Wmid-1})\n{a}:\n  s_waitcnt vmcnt({Whi-1})")
    def ctl_pre(kk):
        if ctl and kk % evalstep == evalstep - 1 - defer:
            e(f"  s_memrealtime s[{sT}:{sT+1}]")
    def ctl_post(kk):
        if not ctl:
            return
        if kk % evalstep == evalstep - 1:
            e(f"  s_add_u32 s{sVT}, s{sVT}, {U*evalstep//4}")
            e("  s_waitcnt lgkmcnt(0)")
            e(f"  s_sub_u32 s{sPhi}, s{sVT}, s{sT}")
            e(f"  s_cmp_eq_u32 s{sHave}, 0\n  s_cselect_b32 s{sK}, s{sPhi}, s{sK}")
            e(f"  s_sub_u32 s3, s{sPhi}, s{sK}")
            e(f"  s_cmp_gt_i32 s3, {ta}\n  s_cselect_b32 s{sLvl}, 1, 0")
            e(f"  s_cmp_gt_i32 s3, {tb}\n  s_cselect_b32 s{sLvl}, 2, s{sLvl}")
            if trace and kk == 15:
                e(f"  s_lshr_b32 m0, s{sCnt}, 1\n  s_nop 0\n  v_writelane_b32 v{vTr}, s3, m0")
        if kk == 15 and not nopub:
            l = newlab()
            e(f"  s_cmp_eq_u32 s{sRep}, 0\n  s_cbranch_scc1 {l}")
            if pubs:
                pm = sum(1 << (int(g) + 1) for g in str(pubs).split('.'))
                e(f"  s_lshr_b32 s3, s{sCnt}, 1\n  s_bitcmp1_b32 {pm & 0xffffffff:#x}, s3\n  s_cbranch_scc0 {l}")
            elif pubP > 1:
                if stag:
                    e(f"  s_lshr_b32 s3, s{sCnt}, 1\n  s_mul_i32 s4, s2, {stag}\n  s_add_u32 s3, s3, s4\n  s_and_b32 s3, s3, {pubP-1}\n  s_cmp_lg_u32 s3, 1\n  s_cbranch_scc1 {l}")
                else:
                    e(f"  s_and_b32 s3, s{sCnt}, {2*pubP-1}\n  s_cmp_lg_u32 s3, 2\n  s_cbranch_scc1 {l}")
            if pubmode == 'line':
                for i in range(4):
                    e(f"  v_mov_b32 v{vX+i}, s{sPhi}")
                e(f"  buffer_store_dwordx4 v[{vX}:{vX+3}], v{vPubA}, s[{sDb}:{sDb+3}], 0 offen {pubflags}")
                e("  s_nop 1")
            elif pubmode == 'swap':
                e(f"  v_mov_b32 v{vX}, s{sPhi}")
                e(f"  buffer_atomic_swap v{vX}, v{vPubA}, s[{sDb}:{sDb+3}], 0 offen {pubflags}")
            else:
                e(f"  v_mov_b32 v{vX}, s{sPhi}")
                e(f"  buffer_store_dword v{vX}, v{vPubA}, s[{sDb}:{sDb+3}], 0 offen {pubflags}")
            e(f"{l}:")
        if kk == 12:
            l = newlab()
            e(f"  s_cmp_eq_u32 s{sPend}, 0\n  s_cbranch_scc1 {l}")
            e(f"  v_subrev_u32 v{vX}, s{sPhi}, v{vPoll}")
            e(f"  v_add_u32 v{vPoll}, {win}, v{vX}")
            e(f"  v_cmp_gt_u32 vcc, {2*win}, v{vPoll}")
            e(f"  s_nop 1")
            e(f"  v_cndmask_b32 v{vX}, 0, v{vX}, vcc")
            e("  s_nop 1")
            e(f"  v_add_u32_dpp v{vX}, v{vX}, v{vX} quad_perm:[1,0,3,2] {DPPF}\n  s_nop 1")
            if nrep >= 4:
                e(f"  v_add_u32_dpp v{vX}, v{vX}, v{vX} quad_perm:[2,3,0,1] {DPPF}\n  s_nop 1")
            if nrep >= 8:
                e(f"  v_add_u32_dpp v{vX}, v{vX}, v{vX} row_half_mirror {DPPF}\n  s_nop 1")
            if nrep == 16:
                e(f"  v_add_u32_dpp v{vX}, v{vX}, v{vX} row_mirror {DPPF}\n  s_nop 1")
            e(f"  v_readfirstlane_b32 s3, v{vX}")
            e(f"  s_mov_b32 s{sPend}, 0\n  s_mov_b32 s{sHave}, 1")
            e(f"  s_ashr_i32 s3, s3, {int(math.log2(nrep))}")
            e(f"  s_add_u32 s{sK}, s{sPhi}, s3")
            e(f"{l}:")
        if kk == 1 and not nopoll:
            l = newlab()
            if pubs:
                qm = sum(1 << (int(g) + 1 + polld) for g in str(pubs).split('.'))
                e(f"  s_lshr_b32 s3, s{sCnt}, 1\n  s_and_b32 s4, s{sWave}, {pollspread-1}\n  s_sub_u32 s3, s3, s4")
                e(f"  s_bitcmp1_b32 {qm & 0xffffffff:#x}, s3\n  s_cbranch_scc0 {l}")
            else:
                e(f"  s_lshr_b32 s3, s{sCnt}, 1\n  s_add_u32 s3, s3, s{sWave}\n  s_and_b32 s3, s3, {PP-1}")
                e(f"  s_cmp_lg_u32 s3, {PP-1}\n  s_cbranch_scc1 {l}")
                e(f"  s_cmp_lt_u32 s{sCnt}, 4\n  s_cbranch_scc1 {l}")
            e(f"  buffer_load_dword v{vPoll}, v{vPollA}, s[{sDb}:{sDb+3}], 0 offen {pollflags}")
            e(f"  s_mov_b32 s{sPend}, 1")
            e(f"{l}:")

    def lvl1(j):
        e(f"  v_add_f32_dpp v{vB+j}, v{vA}, v{vA} row_ror:8 {DPPF}")
        e(f"  v_add_f32_dpp v{vB+j}, v{vA+1}, v{vA+1} row_ror:8 row_mask:0xf bank_mask:0xc")
    def lvl2(j):
        e(f"  v_add_f32_dpp v{vC+j}, v{vB}, v{vB} row_half_mirror {DPPF}")
        e(f"  v_add_f32_dpp v{vC+j}, v{vB+1}, v{vB+1} row_half_mirror row_mask:0xf bank_mask:0xa")
    def lvl3(j):
        e(f"  v_add_f32_dpp v{vC}, v{vC}, v{vC} quad_perm:[2,3,0,1] {DPPF}")
        e(f"  v_add_f32_dpp v{vC+1}, v{vC+1}, v{vC+1} quad_perm:[2,3,0,1] {DPPF}")
        e(f"  v_cndmask_b32 v{vD+j}, v{vC}, v{vC+1}, s[{sB1}:{sB1+1}]")
    def lvl4():
        e(f"  v_add_f32_dpp v{vD}, v{vD}, v{vD} quad_perm:[1,0,3,2] {DPPF}")
        e(f"  v_add_f32_dpp v{vD+1}, v{vD+1}, v{vD+1} quad_perm:[1,0,3,2] {DPPF}")
        e(f"  v_cndmask_b32 v{vT0}, v{vD}, v{vD+1}, s[{sB0}:{sB0+1}]")
    def combine_after(kk):
        if kk % 2 == 1:
            lvl1((kk >> 1) & 1)
        if kk % 4 == 3:
            e("  s_nop 1"); lvl2((kk >> 2) & 1)
        if kk % 8 == 7:
            e("  s_nop 1"); lvl3((kk >> 3) & 1)
        if kk == 15:
            e("  s_nop 1"); lvl4()
            e(f"  v_mul_f32 v{vT0}, s{sC}, v{vT0}")
            e(f"  ds_write_b32 v{vLds}, v{vT0}")
            e(f"  v_max_f32 v{vM}, v{vM}, v{vT0}")
            e(f"  v_add_u32 v{vLds}, 256, v{vLds}")
    e(f"  s_mov_b32 s{sIter}, {ngroups}")
    e("L_kloop:")
    for kk in range(16):
        waits()
        load()
        ctl_pre(kk)
        if kk > 0 and (kk - 1) % 2 == 1:
            e("  s_nop 0")
            combine_after(kk - 1)
        a = vA + (kk & 1)
        for d in range(4):
            src2 = "0" if d == 0 else f"v{a}"
            e(f"  v_dot2_f32_bf16 v{a}, v{vR+4*(kk%R)+d}, v{vQ+d}, {src2}")
        if kk == 15:
            e("  s_nop 2")
            combine_after(15)
        ctl_post(kk)
    e(f"  s_sub_u32 s{sIter}, s{sIter}, 1\n  s_cmp_lg_u32 s{sIter}, 0\n  s_cbranch_scc1 L_kloop")
    e(f"  v_subrev_u32 v{vLds}, {ngroups*256}, v{vLds}")
    e(f"  ds_read_b32 v{vPn}, v{vLds}")
    def allreduce(v, op, t):
        for sh in (8, 4, 2, 1):
            e("  s_nop 1")
            e(f"  v_{op}_f32_dpp v{v}, v{v}, v{v} row_ror:{sh} {DPPF}")
        e(f"  v_mov_b32 v{t}, v{v}\n  s_nop 1\n  v_permlane16_swap_b32 v{v}, v{t}\n  s_nop 1\n  v_{op}_f32 v{v}, v{v}, v{t}")
        e(f"  v_mov_b32 v{t}, v{v}\n  s_nop 1\n  v_permlane32_swap_b32 v{v}, v{t}\n  s_nop 1\n  v_{op}_f32 v{v}, v{v}, v{t}")
    allreduce(vM, "max", vT0)
    e(f"  s_mov_b32 s{sIter}, {ngroups}")
    e("L_vloop:")
    for kk in range(16):
        waits()
        load()
        ctl_pre(kk)
        if kk == 0:
            e("  s_waitcnt lgkmcnt(0)")
            e(f"  v_sub_f32 v{vP}, v{vPn}, v{vM}")
            e(f"  v_add_u32 v{vLds}, 256, v{vLds}")
            e(f"  v_exp_f32 v{vP}, v{vP}")
            e(f"  ds_read_b32 v{vPn}, v{vLds}")
            e(f"  s_nop 0")
            e(f"  v_add_f32 v{vL}, v{vL}, v{vP}")
        vr = vR + 4 * (kk % R)
        sel = kk & 1
        e(f"  v_mov_b32_dpp v{vPb+sel}, v{vP} row_newbcast:{bitrev4(kk)} {DPPF}")
        for d in range(4):
            e(f"  v_lshlrev_b32 v{vTmp+2*d}, 16, v{vr+d}")
            e(f"  v_and_b32 v{vTmp+2*d+1}, s{sMask}, v{vr+d}")
        for d in range(4):
            e(f"  v_pk_fma_f32 v[{vAcc+2*d}:{vAcc+2*d+1}], v[{vTmp+2*d}:{vTmp+2*d+1}], v[{vPb}:{vPb+1}], v[{vAcc+2*d}:{vAcc+2*d+1}] op_sel:[0,{sel},0] op_sel_hi:[1,{sel},1]")
        ctl_post(kk)
    e(f"  s_sub_u32 s{sIter}, s{sIter}, 1\n  s_cmp_lg_u32 s{sIter}, 0\n  s_cbranch_scc1 L_vloop")
    if stamps:
        e(f"  s_memrealtime s[{sSt+4}:{sSt+5}]")
    t = vTmp
    for i in range(4):
        e(f"  v_permlane32_swap_b32 v{vAcc+i}, v{vAcc+i+4}")
    e(f"  v_and_b32 v2, 15, v{vLane}\n  v_lshlrev_b32 v2, 5, v2\n  v_lshrrev_b32 v{t}, 4, v{vLane}\n  v_lshl_add_u32 v2, v{t}, 3, v2")
    for i in range(4):
        e(f"  v_add_f32 v{vAcc+i}, v{vAcc+i}, v{vAcc+i+4}")
    e(f"  s_lshl_b32 s3, s{sWave}, 9\n  v_add_u32 v2, s3, v2")
    e(f"  v_permlane16_swap_b32 v{vAcc}, v{vAcc+2}\n  v_permlane16_swap_b32 v{vAcc+1}, v{vAcc+3}")
    e("  s_nop 1")
    e(f"  v_add_f32 v{vAcc}, v{vAcc}, v{vAcc+2}\n  v_add_f32 v{vAcc+1}, v{vAcc+1}, v{vAcc+3}")
    e(f"  ds_write_b64 v2, v[{vAcc}:{vAcc+1}] offset:{S_BYTES}")
    allreduce(vL, "add", vT0)
    e(f"  s_lshl_b32 s3, s{sWave}, 3\n  v_mov_b32 v2, s3")
    e(f"  v_cmp_eq_u32 vcc, 0, v{vLane}\n  s_and_saveexec_b64 s[4:5], vcc")
    e(f"  ds_write_b64 v2, v[{vM}:{vM+1}] offset:{S_BYTES+NW*512}")
    e(f"  s_mov_b64 exec, s[4:5]")
    e("  s_waitcnt lgkmcnt(0)\n  s_barrier")
    e(f"  s_cmp_lg_u32 s{sWave}, 0\n  s_cbranch_scc1 L_end")
    e("  s_waitcnt vmcnt(0)")
    stt = vR; dt = vR + 2 * NW
    e(f"  v_mov_b32 v2, 0\n  v_lshlrev_b32 v{vT0}, 3, v{vLane}")
    for w in range(0, NW - 1, 2):
        e(f"  ds_read_b128 v[{stt+2*w}:{stt+2*w+3}], v2 offset:{S_BYTES+NW*512+w*8}")
    for w in range(NW):
        e(f"  ds_read_b64 v[{dt+2*w}:{dt+2*w+1}], v{vT0} offset:{S_BYTES+w*512}")
    e(f"  s_waitcnt lgkmcnt({NW})")
    e(f"  v_max_f32 v{vM}, v{stt}, v{stt+2}")
    for w in range(2, NW):
        e(f"  v_max_f32 v{vM}, v{vM}, v{stt+2*w}")
    for w in range(NW):
        e(f"  v_sub_f32 v{stt+2*w}, v{stt+2*w}, v{vM}")
    for w in range(NW):
        e(f"  v_exp_f32 v{stt+2*w}, v{stt+2*w}")
    e("  s_nop 0")
    e(f"  v_mul_f32 v{vL}, v{stt}, v{stt+1}")
    for w in range(1, NW):
        e(f"  v_fmac_f32 v{vL}, v{stt+2*w}, v{stt+2*w+1}")
    e(f"  v_rcp_f32 v{vL}, v{vL}")
    e("  s_waitcnt lgkmcnt(0)")
    e(f"  v_mul_f32 v{vAcc}, v{stt}, v{dt}\n  v_mul_f32 v{vAcc+1}, v{stt}, v{dt+1}")
    for w in range(1, NW):
        e(f"  v_fmac_f32 v{vAcc}, v{stt+2*w}, v{dt+2*w}\n  v_fmac_f32 v{vAcc+1}, v{stt+2*w}, v{dt+2*w+1}")
    e(f"  v_lshlrev_b32 v2, 2, v{vLane}")
    e(f"  v_mul_f32 v{vAcc}, v{vAcc}, v{vL}\n  v_mul_f32 v{vAcc+1}, v{vAcc+1}, v{vL}")
    e(f"  v_cvt_pk_bf16_f32 v{vAcc}, v{vAcc}, v{vAcc+1}")
    e(f"  buffer_store_dword v{vAcc}, v2, s[{sO}:{sO+3}], 0 offen")
    if stamps:
        b = vR + 16
        e(f"  s_waitcnt vmcnt(0)\n  s_memrealtime s[{sSt+6}:{sSt+7}]")
        e("  s_getreg_b32 s66, hwreg(HW_REG_HW_ID)\n  s_getreg_b32 s67, hwreg(HW_REG_XCC_ID)")
        e("  s_lshl_b32 s3, s68, 6\n  s_add_u32 s64, s64, s3\n  s_addc_u32 s65, s65, 0\n  s_waitcnt lgkmcnt(0)")
        for i in range(8):
            e(f"  v_mov_b32 v{b+i}, s{sSt+i}")
        if trace:
            e(f"  s_mul_i32 s3, s68, 192\n  s_add_u32 s3, s3, 0x100000\n  v_lshl_add_u32 v2, v{vLane}, 2, s3\n  global_store_dword v2, v{vTr}, s[64:65]")
        e(f"  v_mov_b32 v{b+8}, s66\n  v_mov_b32 v{b+9}, s67\n  v_mov_b32 v2, 0")
        e(f"  v_cmp_eq_u32 vcc, 0, v{vLane}\n  s_and_saveexec_b64 s[4:5], vcc")
        e(f"  global_store_dwordx4 v2, v[{b}:{b+3}], s[64:65]\n  global_store_dwordx4 v2, v[{b+4}:{b+7}], s[64:65] offset:16\n  global_store_dwordx2 v2, v[{b+8}:{b+9}], s[64:65] offset:56")
    e("L_end:\n  s_endpgm")
    e('.section .rodata,"a"\n.p2align 6')
    e(f".amdhsa_kernel {NAME}_kernel\n  .amdhsa_next_free_vgpr {nv}\n  .amdhsa_next_free_sgpr 80\n  .amdhsa_accum_offset {(nv+3)//4*4}")
    e("  .amdhsa_group_segment_fixed_size 0\n  .amdhsa_kernarg_size 48\n  .amdhsa_user_sgpr_count 2\n  .amdhsa_user_sgpr_kernarg_segment_ptr 1\n  .amdhsa_system_sgpr_workgroup_id_x 1\n.end_amdhsa_kernel")
    return "\n".join(L) + "\n"

if __name__ == "__main__":
    kw = {}
    for a in sys.argv[2:]:
        k, v = a.split("=", 1)
        if v in ("True", "False"): v = v == "True"
        else:
            try: v = int(v, 0)
            except ValueError: v = v.replace("+", " ")
        kw[k] = v
    open(sys.argv[1], "w").write(gen(**kw))
```

```python
import sys, math, struct
NAME = "standalone__softmax_full_bidir__sampling"
HEADER = """; Decode attention (Sq=1) B=8 H=32 Skv=4096 D=128 bf16: one workgroup (4 waves) per (b,h).
"""
def f2u(x):
    return struct.unpack("<I", struct.pack("<f", x))[0]
def bitrev4(x):
    return ((x & 1) << 3) | ((x & 2) << 1) | ((x & 4) >> 1) | ((x & 8) >> 3)

def gen(b0=13, b1=15, ctl=True, Whi=7, Wmid=5, Wlo=4, ta=-30, tb=30, U=54, PP=4, flags="nt", stamps=False,
        nrep=8, trace=False, evalstep=8, NC=64, CS=256, WSOFF=0x200000, win=2000, nopub=False, nopoll=False, defer=0, pubP=1, pubflags='sc1', pollflags='sc1', pubmode='store', spread=False, usedbg=False, stag=0, pubs='', polld=1, pollspread=2, t0=10, t1=11, t2=-1, xa=0, xm=0, xb=0, hx=0, order='', cfg=False, trtime=False, kmode='mean', U2=0, lv4=False, tc=-45, coff=0, W4='7.6.5.4', init=2, stampk=False):
    L = []; e = L.append
    NW, R = 4, 8
    region = 1 << 20
    ngroups = 16
    rest = [b for b in range(10, 20) if b not in (b0, b1)]
    if t2 < 0:
        t2 = [b for b in rest if b not in (t0, t1)][0]
    generic = (t0, t1) != (10, 11) or xm or cfg
    sCfg = 80
    assert len({b0, b1, t0, t1, t2}) == 5
    holes = (1 << b0) | (1 << b1) | (1 << t2) | (1 << t0) | (1 << t1) | 0x3ff
    def kconst(k):
        return ((k & 1) << t0) | (((k >> 1) & 1) << t1) | (((k >> 2) & 1) << t2)
    sX, sBase = 76, 77
    vOff, vLane = 1, 3
    vQ = 4
    vM, vL = 8, 9
    vP, vPn = 10, 11
    vPb = 12
    vLds, vT0 = 14, 15
    vAcc = 16
    vTmp = 24
    vA, vB, vC, vD = 24, 26, 28, 30
    vR = 32
    vPoll, vPollA, vPubA, vTr, vX = 64, 65, 66, 67, 68
    nv = 72
    sV, sQ, sO, sCur, sDb = 12, 16, 20, 24, 36
    sOff, sOff2, sCnt = 28, 29, 30
    sC, sMask, sIter, sWave = 40, 41, 42, 43
    sB1, sB0 = 32, 34
    sLvl, sVT, sK, sHave, sPhi, sRep, sPend, sT = 52, 53, 54, 55, 70, 71, 72, 74
    sSt = 56
    c = (128 ** -0.5) * math.log2(math.e)
    S_BYTES = 4096 * 4
    lds_bytes = S_BYTES + NW * 512 + NW * 8
    DPPF = "row_mask:0xf bank_mask:0xf"
    lab = {"n": 0}
    def newlab():
        lab["n"] += 1
        return f"L_{lab['n']}"

    e(HEADER + f"; @launch grid=(256,1,1) block=(256,1,1) lds={lds_bytes}")
    e('.amdgcn_target "amdgcn-amd-amdhsa--gfx950"\n.text')
    e(f".globl {NAME}_kernel\n.p2align 8\n.type {NAME}_kernel,@function\n{NAME}_kernel:")
    if stamps:
        e(f"  s_memrealtime s[{sSt}:{sSt+1}]")
    e("  s_load_dwordx8 s[44:51], s[0:1], 0")
    e("  s_cmp_ge_u32 s2, 256\n  s_cbranch_scc1 L_end")
    if ctl:
        e(f"  s_load_dwordx2 s[{sDb}:{sDb+1}], s[0:1], {32 if usedbg else 40}")
    if stamps:
        e(f"  s_load_dwordx2 s[64:65], s[0:1], 40\n  s_mov_b32 s68, s2")
    if cfg:
        e("  s_load_dwordx2 s[98:99], s[0:1], 40\n  s_waitcnt lgkmcnt(0)\n  s_add_u32 s98, s98, 0x300000\n  s_addc_u32 s99, s99, 0")
        e("  s_load_dwordx16 s[80:95], s[98:99], 0\n  s_lshl_b32 s3, s2, 3\n  s_add_u32 s98, s98, s3\n  s_addc_u32 s99, s99, 0\n  s_load_dwordx2 s[96:97], s[98:99], 64\n  s_waitcnt lgkmcnt(0)")
    e(f"  v_lshrrev_b32 v2, 6, v0\n  v_and_b32 v{vLane}, 63, v0\n  v_readfirstlane_b32 s{sWave}, v2")
    e(f"  v_lshlrev_b32 v{vOff}, 4, v{vLane}")
    e(f"  v_and_b32 v2, 15, v{vLane}\n  v_lshlrev_b32 v2, 4, v2")
    e(f"  s_and_b32 s3, s{sWave}, 1\n  s_lshl_b32 s3, s3, {b0}\n  s_lshr_b32 s4, s{sWave}, 1\n  s_lshl_b32 s4, s4, {b1}\n  s_or_b32 s3, s3, s4")
    if cfg:
        e(f"  s_cmp_eq_u32 s{sWave}, 1\n  s_cselect_b32 s3, s81, s80\n  s_cmp_eq_u32 s{sWave}, 2\n  s_cselect_b32 s3, s82, s3\n  s_cmp_eq_u32 s{sWave}, 3\n  s_cselect_b32 s3, s83, s3")
        e(f"  s_xor_b32 s3, s3, s97")
    if generic:
        e(f"  s_mov_b32 s{sX}, s3")
        if xm:
            e(f"  s_lshr_b32 s4, s2, {xa}\n  s_and_b32 s4, s4, {xm}\n  s_lshl_b32 s4, s4, {xb}\n  s_xor_b32 s{sX}, s{sX}, s4")
        e(f"  s_mov_b32 s{sBase}, s{sX}")
    else:
        e(f"  v_add_u32 v{vOff}, s3, v{vOff}")
    if cfg:
        e("  s_and_b32 s7, s96, 255")
    elif hx == 1:
        e("  s_and_b32 s7, s2, 7\n  s_lshl_b32 s7, s7, 5\n  s_lshr_b32 s6, s2, 3\n  s_add_u32 s7, s7, s6")
    elif hx == 2:
        e("  s_brev_b32 s7, s2\n  s_lshr_b32 s7, s7, 24")
    elif hx == 3:
        e("  s_lshr_b32 s7, s2, 1\n  s_and_b32 s6, s2, 1\n  s_lshl_b32 s6, s6, 7\n  s_add_u32 s7, s7, s6")
    else:
        e("  s_mov_b32 s7, s2")
    e(f"  s_lshl_b32 s5, s7, 20\n  s_lshl_b32 s6, s7, 8")
    for s_, n in ((sCur, region), (sQ, 256), (sO, 256)):
        e(f"  s_mov_b32 s{s_+2}, {n:#x}\n  s_mov_b32 s{s_+3}, 0x20000")
    e(f"  s_mov_b32 s{sOff}, 0\n  s_mov_b32 s{sCnt}, 0")
    e(f"  s_mov_b32 s{sOff2}, s{sX}" if generic else f"  s_mov_b32 s{sOff2}, {1<<t2:#x}")
    e("  s_waitcnt lgkmcnt(0)")
    if stampk:
        e(f"  s_memrealtime s[{sSt+4}:{sSt+5}]")
    e(f"  s_add_u32 s{sCur}, s46, s5\n  s_addc_u32 s{sCur+1}, s47, 0")
    e(f"  s_add_u32 s{sQ}, s44, s6\n  s_addc_u32 s{sQ+1}, s45, 0")
    e(f"  s_add_u32 s{sV}, s48, s5\n  s_addc_u32 s{sV+1}, s49, 0")

    st = {"i": 0}
    def nexttile():
        if cfg:
            e(f"  s_or_b32 s{sOff}, s{sOff}, s92\n  s_add_u32 s{sOff}, s{sOff}, 1\n  s_and_b32 s{sOff}, s{sOff}, s93")
        else:
            e(f"  s_or_b32 s{sOff}, s{sOff}, {holes:#x}\n  s_add_u32 s{sOff}, s{sOff}, 1\n  s_and_b32 s{sOff}, s{sOff}, {(region-1) & ~holes:#x}")
        if generic:
            e(f"  s_xor_b32 s{sBase}, s{sOff}, s{sX}")
        else:
            e(f"  s_or_b32 s{sOff2}, s{sOff}, {1<<t2:#x}")
        e(f"  s_add_u32 s{sCnt}, s{sCnt}, 1")
        e(f"  s_cmp_eq_u32 s{sCnt}, 32")
        e(f"  s_cselect_b64 s[{sCur}:{sCur+1}], s[{sV}:{sV+1}], s[{sCur}:{sCur+1}]")
        e(f"  s_cmp_ge_u32 s{sCnt}, 64")
        e(f"  s_cselect_b32 s{sCur+2}, 0, s{sCur+2}")
    def load():
        slot = st["i"] % R
        if generic:
            e(f"  buffer_load_dwordx4 v[{vR+4*slot}:{vR+4*slot+3}], v{vOff}, s[{sCur}:{sCur+3}], s{sOff2} offen {flags}")
        else:
            so = sOff if slot < 4 else sOff2
            e(f"  buffer_load_dwordx4 v[{vR+4*slot}:{vR+4*slot+3}], v{vOff}, s[{sCur}:{sCur+3}], s{so} offen offset:{(slot%4)*1024} {flags}")
        st["i"] += 1
        if st["i"] % R == 0:
            nexttile()
        if generic:
            if cfg:
                e(f"  s_xor_b32 s{sOff2}, s{sBase}, s{84 + st['i'] % R}")
            else:
                e(f"  s_xor_b32 s{sOff2}, s{sBase}, {kconst(st['i'] % R):#x}")
    load()
    e(f"  buffer_load_dwordx4 v[{vQ}:{vQ+3}], v2, s[{sQ}:{sQ+3}], 0 offen")
    for _ in range(R - 2):
        load()
    e(f"  s_add_u32 s{sO}, s50, s6\n  s_addc_u32 s{sO+1}, s51, 0")
    e(f"  s_mov_b32 s{sC}, {f2u(c):#x}\n  s_mov_b32 s{sMask}, 0xffff0000")
    e(f"  s_mov_b32 s{sB1}, 0xcccccccc\n  s_mov_b32 s{sB1+1}, 0xcccccccc")
    e(f"  s_mov_b32 s{sB0}, 0xaaaaaaaa\n  s_mov_b32 s{sB0+1}, 0xaaaaaaaa")
    e(f"  s_mul_i32 s3, s{sWave}, {ngroups*256}")
    e(f"  v_lshl_add_u32 v{vLds}, v{vLane}, 2, s3")
    e(f"  v_mov_b32 v{vM}, 0xff7fffff\n  v_mov_b32 v{vL}, 0")
    for i in range(8):
        e(f"  v_mov_b32 v{vAcc+i}, 0")
    if ctl:
        if not usedbg:
            e(f"  s_add_u32 s{sDb}, s{sDb}, {WSOFF:#x}\n  s_addc_u32 s{sDb+1}, s{sDb+1}, 0")
        nbytes = NC * CS * (nrep if spread else 1)
        e(f"  s_mov_b32 s{sDb+2}, {nbytes}\n  s_mov_b32 s{sDb+3}, 0x20000")
        e(f"  s_mov_b32 s{sLvl}, {init if lv4 else 1}\n  s_mov_b32 s{sVT}, 0\n  s_mov_b32 s{sK}, 0\n  s_mov_b32 s{sHave}, 0\n  s_mov_b32 s{sPend}, 0\n  s_mov_b32 s{sPhi}, 0")
        rs = CS if spread else 4
        cs = CS * nrep if spread else CS
        e(f"  v_and_b32 v{vPollA}, {nrep-1}, v{vLane}\n  v_mul_u32_u24 v{vPollA}, {rs}, v{vPollA}")
        e(f"  s_lshr_b32 s3, s2, 3\n  s_and_b32 s3, s3, {NC-1}\n  s_mul_i32 s3, s3, {cs}\n  v_add_u32 v{vPollA}, s3, v{vPollA}")
        if pubmode == 'line':
            assert spread and NC <= 8
            e(f"  v_lshrrev_b32 v{vPubA}, 3, v{vLane}\n  v_mul_u32_u24 v{vPubA}, {cs}, v{vPubA}")
            e(f"  v_and_b32 v{vX}, 7, v{vLane}\n  v_lshl_add_u32 v{vPubA}, v{vX}, 4, v{vPubA}")
        else:
            e(f"  v_mul_u32_u24 v{vPubA}, {cs}, v{vLane}")
        e(f"  s_mul_i32 s3, s2, {rs}\n  v_add_u32 v{vPubA}, s3, v{vPubA}")
        e(f"  s_cmp_lt_u32 s2, {nrep}\n  s_cselect_b32 s{sRep}, 1, 0\n  s_cmp_eq_u32 s{sWave}, 0\n  s_cselect_b32 s{sRep}, s{sRep}, 0")
    if stamps:
        e(f"  s_waitcnt vmcnt({R-2})\n  s_memrealtime s[{sSt+2}:{sSt+3}]")

    def waits():
        if not ctl:
            e(f"  s_waitcnt vmcnt({Wmid-1})")
            return
        if lv4:
            ws = [int(x) for x in str(W4).split('.')]
            A, B5, B7 = newlab(), newlab(), newlab()
            e(f"  s_cmp_lt_u32 s{sLvl}, 2\n  s_cbranch_scc1 {A}\n  s_bitcmp1_b32 s{sLvl}, 0\n  s_cbranch_scc0 {B5}")
            e(f"  s_waitcnt vmcnt({ws[3]-1})\n{B5}:\n  s_waitcnt vmcnt({ws[2]-1})\n  s_branch {B7}")
            e(f"{A}:\n  s_bitcmp1_b32 s{sLvl}, 0\n  s_cbranch_scc0 {B7}\n  s_waitcnt vmcnt({ws[1]-1})\n{B7}:\n  s_waitcnt vmcnt({ws[0]-1})")
            return
        a, b = newlab(), newlab()
        e(f"  s_cmp_eq_u32 s{sLvl}, 0\n  s_cbranch_scc1 {a}\n  s_cmp_eq_u32 s{sLvl}, 1\n  s_cbranch_scc1 {b}")
        e(f"  s_waitcnt vmcnt({Wlo-1})\n{b}:\n  s_waitcnt vmcnt({Wmid-1})\n{a}:\n  s_waitcnt vmcnt({Whi-1})")
    def ctl_pre(kk):
        if ctl and kk % evalstep == evalstep - 1 - defer:
            e(f"  s_memrealtime s[{sT}:{sT+1}]")
    def ctl_post(kk):
        if not ctl:
            return
        if kk % evalstep == evalstep - 1:
            e(f"  s_add_u32 s{sVT}, s{sVT}, s94" if cfg else f"  s_add_u32 s{sVT}, s{sVT}, {(U2 or 2*U)*evalstep//8}")
            e("  s_waitcnt lgkmcnt(0)")
            e(f"  s_sub_u32 s{sPhi}, s{sVT}, s{sT}")
            e(f"  s_cmp_eq_u32 s{sHave}, 0\n  s_cselect_b32 s{sK}, s{sPhi}, s{sK}")
            e(f"  s_sub_u32 s3, s{sPhi}, s{sK}")
            if lv4:
                e(f"  s_cmp_gt_i32 s3, {tc}\n  s_cselect_b32 s{sLvl}, 1, 0")
                e(f"  s_cmp_gt_i32 s3, {ta}\n  s_cselect_b32 s{sLvl}, 2, s{sLvl}")
                e(f"  s_cmp_gt_i32 s3, {tb}\n  s_cselect_b32 s{sLvl}, 3, s{sLvl}")
                e(f"  s_cmp_eq_u32 s{sHave}, 0\n  s_cselect_b32 s{sLvl}, {init}, s{sLvl}")
            else:
                e(f"  s_cmp_gt_i32 s3, {ta}\n  s_cselect_b32 s{sLvl}, 1, 0")
                e(f"  s_cmp_gt_i32 s3, {tb}\n  s_cselect_b32 s{sLvl}, 2, s{sLvl}")
            if trace and kk == 15:
                e(f"  s_lshr_b32 m0, s{sCnt}, 1\n  s_nop 0\n  v_writelane_b32 v{vTr}, s{sT if trtime else 3}, m0")
        if kk == 15 and not nopub:
            l = newlab()
            e(f"  s_cmp_eq_u32 s{sRep}, 0\n  s_cbranch_scc1 {l}")
            if pubs:
                pm = sum(1 << (int(g) + 1) for g in str(pubs).split('.'))
                e(f"  s_lshr_b32 s3, s{sCnt}, 1\n  s_bitcmp1_b32 {pm & 0xffffffff:#x}, s3\n  s_cbranch_scc0 {l}")
            elif pubP > 1:
                if stag:
                    e(f"  s_lshr_b32 s3, s{sCnt}, 1\n  s_mul_i32 s4, s2, {stag}\n  s_add_u32 s3, s3, s4\n  s_and_b32 s3, s3, {pubP-1}\n  s_cmp_lg_u32 s3, 1\n  s_cbranch_scc1 {l}")
                else:
                    e(f"  s_and_b32 s3, s{sCnt}, {2*pubP-1}\n  s_cmp_lg_u32 s3, 2\n  s_cbranch_scc1 {l}")
            if pubmode == 'line':
                for i in range(4):
                    e(f"  v_mov_b32 v{vX+i}, s{sPhi}")
                e(f"  buffer_store_dwordx4 v[{vX}:{vX+3}], v{vPubA}, s[{sDb}:{sDb+3}], 0 offen {pubflags}")
                e("  s_nop 1")
            elif pubmode == 'swap':
                e(f"  v_mov_b32 v{vX}, s{sPhi}")
                e(f"  buffer_atomic_swap v{vX}, v{vPubA}, s[{sDb}:{sDb+3}], 0 offen {pubflags}")
            else:
                e(f"  v_mov_b32 v{vX}, s{sPhi}")
                e(f"  buffer_store_dword v{vX}, v{vPubA}, s[{sDb}:{sDb+3}], 0 offen {pubflags}")
            e(f"{l}:")
        if kk == 12:
            l = newlab()
            e(f"  s_cmp_eq_u32 s{sPend}, 0\n  s_cbranch_scc1 {l}")
            e(f"  v_subrev_u32 v{vX}, s{sPhi}, v{vPoll}")
            e(f"  v_add_u32 v{vPoll}, {win}, v{vX}")
            e(f"  v_cmp_gt_u32 vcc, {2*win}, v{vPoll}")
            e(f"  s_nop 1")
            e(f"  v_cndmask_b32 v{vX}, 0, v{vX}, vcc")
            e(f"  v_mov_b32 v{vX+1}, v{vX}")
            e("  s_nop 1")
            perms = ["quad_perm:[1,0,3,2]", "quad_perm:[2,3,0,1]", "row_half_mirror", "row_mirror"][:int(math.log2(nrep))]
            for p in perms:
                e(f"  v_add_u32_dpp v{vX}, v{vX}, v{vX} {p} {DPPF}")
                e(f"  v_min_i32_dpp v{vX+1}, v{vX+1}, v{vX+1} {p} {DPPF}\n  s_nop 0")
            e(f"  v_readfirstlane_b32 s3, v{vX}")
            e(f"  v_readfirstlane_b32 s4, v{vX+1}")
            e(f"  s_mov_b32 s{sPend}, 0\n  s_mov_b32 s{sHave}, 1")
            e(f"  s_ashr_i32 s3, s3, {int(math.log2(nrep))}")
            if kmode == 'min':
                e("  s_mov_b32 s3, s4")
            elif kmode == 'blend':
                e("  s_add_i32 s3, s3, s4\n  s_ashr_i32 s3, s3, 1")
            e(f"  s_add_u32 s{sK}, s{sPhi}, s3")
            if coff:
                e(f"  s_add_u32 s{sK}, s{sK}, {coff}")
            e(f"{l}:")
        if kk == 1 and not nopoll:
            l = newlab()
            if pubs:
                qm = sum(1 << (int(g) + 1 + polld) for g in str(pubs).split('.'))
                e(f"  s_lshr_b32 s3, s{sCnt}, 1\n  s_and_b32 s4, s{sWave}, {pollspread-1}\n  s_sub_u32 s3, s3, s4")
                e(f"  s_bitcmp1_b32 {qm & 0xffffffff:#x}, s3\n  s_cbranch_scc0 {l}")
            else:
                e(f"  s_lshr_b32 s3, s{sCnt}, 1\n  s_add_u32 s3, s3, s{sWave}\n  s_and_b32 s3, s3, {PP-1}")
                e(f"  s_cmp_lg_u32 s3, {PP-1}\n  s_cbranch_scc1 {l}")
                e(f"  s_cmp_lt_u32 s{sCnt}, 4\n  s_cbranch_scc1 {l}")
            e(f"  buffer_load_dword v{vPoll}, v{vPollA}, s[{sDb}:{sDb+3}], 0 offen {pollflags}")
            e(f"  s_mov_b32 s{sPend}, 1")
            e(f"{l}:")

    def lvl1(j):
        e(f"  v_add_f32_dpp v{vB+j}, v{vA}, v{vA} row_ror:8 {DPPF}")
        e(f"  v_add_f32_dpp v{vB+j}, v{vA+1}, v{vA+1} row_ror:8 row_mask:0xf bank_mask:0xc")
    def lvl2(j):
        e(f"  v_add_f32_dpp v{vC+j}, v{vB}, v{vB} row_half_mirror {DPPF}")
        e(f"  v_add_f32_dpp v{vC+j}, v{vB+1}, v{vB+1} row_half_mirror row_mask:0xf bank_mask:0xa")
    def lvl3(j):
        e(f"  v_add_f32_dpp v{vC}, v{vC}, v{vC} quad_perm:[2,3,0,1] {DPPF}")
        e(f"  v_add_f32_dpp v{vC+1}, v{vC+1}, v{vC+1} quad_perm:[2,3,0,1] {DPPF}")
        e(f"  v_cndmask_b32 v{vD+j}, v{vC}, v{vC+1}, s[{sB1}:{sB1+1}]")
    def lvl4():
        e(f"  v_add_f32_dpp v{vD}, v{vD}, v{vD} quad_perm:[1,0,3,2] {DPPF}")
        e(f"  v_add_f32_dpp v{vD+1}, v{vD+1}, v{vD+1} quad_perm:[1,0,3,2] {DPPF}")
        e(f"  v_cndmask_b32 v{vT0}, v{vD}, v{vD+1}, s[{sB0}:{sB0+1}]")
    def combine_after(kk):
        if kk % 2 == 1:
            lvl1((kk >> 1) & 1)
        if kk % 4 == 3:
            e("  s_nop 1"); lvl2((kk >> 2) & 1)
        if kk % 8 == 7:
            e("  s_nop 1"); lvl3((kk >> 3) & 1)
        if kk == 15:
            e("  s_nop 1"); lvl4()
            e(f"  v_mul_f32 v{vT0}, s{sC}, v{vT0}")
            e(f"  ds_write_b32 v{vLds}, v{vT0}")
            e(f"  v_max_f32 v{vM}, v{vM}, v{vT0}")
            e(f"  v_add_u32 v{vLds}, 256, v{vLds}")
    e(f"  s_mov_b32 s{sIter}, {ngroups}")
    e("L_kloop:")
    for kk in range(16):
        waits()
        load()
        ctl_pre(kk)
        if kk > 0 and (kk - 1) % 2 == 1:
            e("  s_nop 0")
            combine_after(kk - 1)
        a = vA + (kk & 1)
        for d in range(4):
            src2 = "0" if d == 0 else f"v{a}"
            e(f"  v_dot2_f32_bf16 v{a}, v{vR+4*(kk%R)+d}, v{vQ+d}, {src2}")
        if kk == 15:
            e("  s_nop 2")
            combine_after(15)
        ctl_post(kk)
    e(f"  s_sub_u32 s{sIter}, s{sIter}, 1\n  s_cmp_lg_u32 s{sIter}, 0\n  s_cbranch_scc1 L_kloop")
    e(f"  v_subrev_u32 v{vLds}, {ngroups*256}, v{vLds}")
    e(f"  ds_read_b32 v{vPn}, v{vLds}")
    def allreduce(v, op, t):
        for sh in (8, 4, 2, 1):
            e("  s_nop 1")
            e(f"  v_{op}_f32_dpp v{v}, v{v}, v{v} row_ror:{sh} {DPPF}")
        e(f"  v_mov_b32 v{t}, v{v}\n  s_nop 1\n  v_permlane16_swap_b32 v{v}, v{t}\n  s_nop 1\n  v_{op}_f32 v{v}, v{v}, v{t}")
        e(f"  v_mov_b32 v{t}, v{v}\n  s_nop 1\n  v_permlane32_swap_b32 v{v}, v{t}\n  s_nop 1\n  v_{op}_f32 v{v}, v{v}, v{t}")
    allreduce(vM, "max", vT0)
    e(f"  s_mov_b32 s{sIter}, {ngroups}")
    e("L_vloop:")
    for kk in range(16):
        waits()
        load()
        ctl_pre(kk)
        if kk == 0:
            e("  s_waitcnt lgkmcnt(0)")
            e(f"  v_sub_f32 v{vP}, v{vPn}, v{vM}")
            e(f"  v_add_u32 v{vLds}, 256, v{vLds}")
            e(f"  v_exp_f32 v{vP}, v{vP}")
            e(f"  ds_read_b32 v{vPn}, v{vLds}")
            e(f"  s_nop 0")
            e(f"  v_add_f32 v{vL}, v{vL}, v{vP}")
        vr = vR + 4 * (kk % R)
        sel = kk & 1
        e(f"  v_mov_b32_dpp v{vPb+sel}, v{vP} row_newbcast:{bitrev4(kk)} {DPPF}")
        for d in range(4):
            e(f"  v_lshlrev_b32 v{vTmp+2*d}, 16, v{vr+d}")
            e(f"  v_and_b32 v{vTmp+2*d+1}, s{sMask}, v{vr+d}")
        for d in range(4):
            e(f"  v_pk_fma_f32 v[{vAcc+2*d}:{vAcc+2*d+1}], v[{vTmp+2*d}:{vTmp+2*d+1}], v[{vPb}:{vPb+1}], v[{vAcc+2*d}:{vAcc+2*d+1}] op_sel:[0,{sel},0] op_sel_hi:[1,{sel},1]")
        ctl_post(kk)
    e(f"  s_sub_u32 s{sIter}, s{sIter}, 1\n  s_cmp_lg_u32 s{sIter}, 0\n  s_cbranch_scc1 L_vloop")
    if stamps and not stampk:
        e(f"  s_memrealtime s[{sSt+4}:{sSt+5}]")
    t = vTmp
    for i in range(4):
        e(f"  v_permlane32_swap_b32 v{vAcc+i}, v{vAcc+i+4}")
    e(f"  v_and_b32 v2, 15, v{vLane}\n  v_lshlrev_b32 v2, 5, v2\n  v_lshrrev_b32 v{t}, 4, v{vLane}\n  v_lshl_add_u32 v2, v{t}, 3, v2")
    for i in range(4):
        e(f"  v_add_f32 v{vAcc+i}, v{vAcc+i}, v{vAcc+i+4}")
    e(f"  s_lshl_b32 s3, s{sWave}, 9\n  v_add_u32 v2, s3, v2")
    e(f"  v_permlane16_swap_b32 v{vAcc}, v{vAcc+2}\n  v_permlane16_swap_b32 v{vAcc+1}, v{vAcc+3}")
    e("  s_nop 1")
    e(f"  v_add_f32 v{vAcc}, v{vAcc}, v{vAcc+2}\n  v_add_f32 v{vAcc+1}, v{vAcc+1}, v{vAcc+3}")
    e(f"  ds_write_b64 v2, v[{vAcc}:{vAcc+1}] offset:{S_BYTES}")
    allreduce(vL, "add", vT0)
    e(f"  s_lshl_b32 s3, s{sWave}, 3\n  v_mov_b32 v2, s3")
    e(f"  v_cmp_eq_u32 vcc, 0, v{vLane}\n  s_and_saveexec_b64 s[4:5], vcc")
    e(f"  ds_write_b64 v2, v[{vM}:{vM+1}] offset:{S_BYTES+NW*512}")
    e(f"  s_mov_b64 exec, s[4:5]")
    e("  s_waitcnt lgkmcnt(0)\n  s_barrier")
    e(f"  s_cmp_lg_u32 s{sWave}, 0\n  s_cbranch_scc1 L_end")
    e("  s_waitcnt vmcnt(0)")
    stt = vR; dt = vR + 2 * NW
    e(f"  v_mov_b32 v2, 0\n  v_lshlrev_b32 v{vT0}, 3, v{vLane}")
    for w in range(0, NW - 1, 2):
        e(f"  ds_read_b128 v[{stt+2*w}:{stt+2*w+3}], v2 offset:{S_BYTES+NW*512+w*8}")
    for w in range(NW):
        e(f"  ds_read_b64 v[{dt+2*w}:{dt+2*w+1}], v{vT0} offset:{S_BYTES+w*512}")
    e(f"  s_waitcnt lgkmcnt({NW})")
    e(f"  v_max_f32 v{vM}, v{stt}, v{stt+2}")
    for w in range(2, NW):
        e(f"  v_max_f32 v{vM}, v{vM}, v{stt+2*w}")
    for w in range(NW):
        e(f"  v_sub_f32 v{stt+2*w}, v{stt+2*w}, v{vM}")
    for w in range(NW):
        e(f"  v_exp_f32 v{stt+2*w}, v{stt+2*w}")
    e("  s_nop 0")
    e(f"  v_mul_f32 v{vL}, v{stt}, v{stt+1}")
    for w in range(1, NW):
        e(f"  v_fmac_f32 v{vL}, v{stt+2*w}, v{stt+2*w+1}")
    e(f"  v_rcp_f32 v{vL}, v{vL}")
    e("  s_waitcnt lgkmcnt(0)")
    e(f"  v_mul_f32 v{vAcc}, v{stt}, v{dt}\n  v_mul_f32 v{vAcc+1}, v{stt}, v{dt+1}")
    for w in range(1, NW):
        e(f"  v_fmac_f32 v{vAcc}, v{stt+2*w}, v{dt+2*w}\n  v_fmac_f32 v{vAcc+1}, v{stt+2*w}, v{dt+2*w+1}")
    e(f"  v_lshlrev_b32 v2, 2, v{vLane}")
    e(f"  v_mul_f32 v{vAcc}, v{vAcc}, v{vL}\n  v_mul_f32 v{vAcc+1}, v{vAcc+1}, v{vL}")
    e(f"  v_cvt_pk_bf16_f32 v{vAcc}, v{vAcc}, v{vAcc+1}")
    e(f"  buffer_store_dword v{vAcc}, v2, s[{sO}:{sO+3}], 0 offen")
    if stamps:
        b = vR + 16
        e(f"  s_waitcnt vmcnt(0)\n  s_memrealtime s[{sSt+6}:{sSt+7}]")
        e("  s_getreg_b32 s66, hwreg(HW_REG_HW_ID)\n  s_getreg_b32 s67, hwreg(HW_REG_XCC_ID)")
        e("  s_lshl_b32 s3, s68, 6\n  s_add_u32 s64, s64, s3\n  s_addc_u32 s65, s65, 0\n  s_waitcnt lgkmcnt(0)")
        for i in range(8):
            e(f"  v_mov_b32 v{b+i}, s{sSt+i}")
        if trace:
            e(f"  s_mul_i32 s3, s68, 192\n  s_add_u32 s3, s3, 0x100000\n  v_lshl_add_u32 v2, v{vLane}, 2, s3\n  global_store_dword v2, v{vTr}, s[64:65]")
        e(f"  v_mov_b32 v{b+8}, s66\n  v_mov_b32 v{b+9}, s67\n  v_mov_b32 v2, 0")
        e(f"  v_cmp_eq_u32 vcc, 0, v{vLane}\n  s_and_saveexec_b64 s[4:5], vcc")
        e(f"  global_store_dwordx4 v2, v[{b}:{b+3}], s[64:65]\n  global_store_dwordx4 v2, v[{b+4}:{b+7}], s[64:65] offset:16\n  global_store_dwordx2 v2, v[{b+8}:{b+9}], s[64:65] offset:56")
    e("L_end:\n  s_endpgm")
    e('.section .rodata,"a"\n.p2align 6')
    e(f".amdhsa_kernel {NAME}_kernel\n  .amdhsa_next_free_vgpr {nv}\n  .amdhsa_next_free_sgpr {100 if cfg else 80}\n  .amdhsa_accum_offset {(nv+3)//4*4}")
    e("  .amdhsa_group_segment_fixed_size 0\n  .amdhsa_kernarg_size 48\n  .amdhsa_user_sgpr_count 2\n  .amdhsa_user_sgpr_kernarg_segment_ptr 1\n  .amdhsa_system_sgpr_workgroup_id_x 1\n.end_amdhsa_kernel")
    return "\n".join(L) + "\n"

if __name__ == "__main__":
    kw = {}
    for a in sys.argv[2:]:
        k, v = a.split("=", 1)
        if v in ("True", "False"): v = v == "True"
        else:
            try: v = int(v, 0)
            except ValueError: v = v.replace("+", " ")
        kw[k] = v
    open(sys.argv[1], "w").write(gen(**kw))
```

```python
import sys, math, struct
NAME = "standalone__softmax_full_bidir__sampling"
HEADER = """; Decode attention (Sq=1), B=8 H=32 Skv=4096 D=128, bf16 in/out.  One workgroup (4 waves) per (b,h).
"""
def f2u(x):
    return struct.unpack("<I", struct.pack("<f", x))[0]
def bitrev4(x):
    return ((x & 1) << 3) | ((x & 2) << 1) | ((x & 4) >> 1) | ((x & 8) >> 3)

def gen(b0=13, b1=15, Whi=7, Wmid=5, Wlo=4, ta=-30, tb=30, U2=108, pubs="0.6.14.21.27", polld=1, pollspread=4,
        wmin=4, coff=0, win=2000, stamps=False, trace=False, cfgc=False, xa=0, xm=0, xb=0, brmode=1, epi=1,
        init=1, ldsk=False, outflags="", mfma=False, pollstep=1, usestep=12, pubstep=15, endhi=0, warm=0):
    L = []; e = L.append
    NW, R = 4, 8
    region = 1 << 20
    ngroups = 16
    t2 = [b for b in range(12, 20) if b not in (b0, b1)][0]
    holes = (1 << b0) | (1 << b1) | (1 << t2) | 0xfff
    vOff, vLane = 1, 3
    vQ = 4
    vM, vL = 8, 9
    vP, vPn = 10, 11
    vPb = 12
    vLds, vT0 = 14, 15
    vAcc = 16
    vTmp = 24
    vA, vB, vC, vD = 24, 26, 28, 30
    vR = 32
    vPoll, vPollA, vPubA, vTr, vX = 64, 65, 66, 67, 68
    nv = 70
    sV, sQ, sO, sCur, sDb = 12, 16, 20, 24, 36
    sOff, sOff2, sCnt = 28, 29, 30
    sC, sMask, sIter, sWave = 40, 41, 42, 43
    sB1, sB0 = 32, 34
    sLvl, sVT, sK, sHave, sPhi, sPubM, sPollM, sT = 52, 53, 54, 55, 70, 71, 72, 74
    sSt = 56
    c = (128 ** -0.5) * math.log2(math.e)
    S_BYTES = 4096 * 4
    lds_bytes = S_BYTES + NW * 512 + NW * 8
    DPPF = "row_mask:0xf bank_mask:0xf"
    lab = {"n": 0}
    def newlab():
        lab["n"] += 1
        return f"L_{lab['n']}"
    pl = [int(g) for g in str(pubs).split(".")]
    pm = sum(1 << (g + 1) for g in pl) & 0xffffffff
    qm = sum(1 << (g + 1 + polld) for g in pl) & 0xffffffff
    C = dict(ta=ta, tb=tb, U2=U2, coff=coff, pm=f"{pm:#x}", qm=f"{qm:#x}", wmin=wmin, wmean=8 - wmin)
    if cfgc:
        C = dict(ta="s80", tb="s81", U2="s82", coff="s83", pm="s84", qm="s85", wmin="s86", wmean="s87")

    e(HEADER + f"; @launch grid=(256,1,1) block=(256,1,1) lds={lds_bytes}")
    e('.amdgcn_target "amdgcn-amd-amdhsa--gfx950"\n.text')
    e(f".globl {NAME}_kernel\n.p2align 8\n.type {NAME}_kernel,@function\n{NAME}_kernel:")
    if stamps:
        e(f"  s_memrealtime s[{sSt}:{sSt+1}]")
    e("  s_load_dwordx8 s[44:51], s[0:1], 0")
    e(f"  s_load_dwordx2 s[{sDb}:{sDb+1}], s[0:1], 32")
    e("  s_cmp_ge_u32 s2, 256\n  s_cbranch_scc1 L_end")
    if stamps:
        e(f"  s_load_dwordx2 s[64:65], s[0:1], 40\n  s_mov_b32 s68, s2")
    e(f"  v_and_b32 v{vLane}, 63, v0")
    e(f"  v_bfe_u32 v2, v0, 6, 1\n  v_lshlrev_b32 v{vOff}, 4, v{vLane}\n  v_lshl_add_u32 v{vOff}, v2, {b0}, v{vOff}")
    e(f"  v_lshrrev_b32 v2, 7, v0\n  v_lshl_add_u32 v{vOff}, v2, {b1}, v{vOff}")
    e(f"  s_lshl_b32 s5, s2, 20")
    e(f"  s_mov_b32 s{sCur+2}, {region:#x}\n  s_mov_b32 s{sCur+3}, 0x20000")
    if xm:
        e(f"  s_lshr_b32 s{sOff}, s2, {xa}\n  s_and_b32 s{sOff}, s{sOff}, {xm}\n  s_lshl_b32 s76, s{sOff}, {xb}")
        assert (xm << xb) & holes == 0
        e(f"  s_mov_b32 s77, 0\n  s_mov_b32 s{sOff}, s76")
    else:
        e(f"  s_mov_b32 s{sOff}, 0")
    e(f"  s_or_b32 s{sOff2}, s{sOff}, {1<<t2:#x}")
    e(f"  s_lshl_b32 s6, s2, 8\n  v_and_b32 v2, 15, v0\n  v_lshlrev_b32 v2, 4, v2")
    e(f"  s_mov_b32 s{sQ+2}, 256\n  s_mov_b32 s{sQ+3}, 0x20000")
    e("  s_waitcnt lgkmcnt(0)")
    e(f"  s_add_u32 s{sCur}, s46, s5\n  s_addc_u32 s{sCur+1}, s47, 0")

    st = {"i": 0}
    def nexttile():
        so = 77 if xm else sOff
        e(f"  s_or_b32 s{so}, s{so}, {holes:#x}\n  s_add_u32 s{so}, s{so}, 1\n  s_and_b32 s{so}, s{so}, {(region-1) & ~holes:#x}")
        if xm:
            e(f"  s_xor_b32 s{sOff}, s77, s76")
        e(f"  s_or_b32 s{sOff2}, s{sOff}, {1<<t2:#x}")
        e(f"  s_add_u32 s{sCnt}, s{sCnt}, 1")
        e(f"  s_cmp_eq_u32 s{sCnt}, 32")
        e(f"  s_cselect_b64 s[{sCur}:{sCur+1}], s[{sV}:{sV+1}], s[{sCur}:{sCur+1}]")
        e(f"  s_cmp_ge_u32 s{sCnt}, 64")
        e(f"  s_cselect_b32 s{sCur+2}, 0, s{sCur+2}")
    def loadins():
        slot = st["i"] % R
        so = sOff if slot < 4 else sOff2
        return f"  buffer_load_dwordx4 v[{vR+4*slot}:{vR+4*slot+3}], v{vOff}, s[{sCur}:{sCur+3}], s{so} offen offset:{(slot%4)*1024} nt"
    def after_load():
        st["i"] += 1
        if st["i"] % R == 0:
            nexttile()
            return True
        return False
    e(loadins()); after_load()
    e(f"  s_add_u32 s{sQ}, s44, s6\n  s_addc_u32 s{sQ+1}, s45, 0")
    e(f"  buffer_load_dwordx4 v[{vQ}:{vQ+3}], v2, s[{sQ}:{sQ+3}], 0 offen")
    for _ in range(R - 2):
        e(loadins()); after_load()
    e(f"  v_lshrrev_b32 v2, 6, v0")
    e(f"  s_add_u32 s{sV}, s48, s5\n  s_addc_u32 s{sV+1}, s49, 0")
    e(f"  v_readfirstlane_b32 s{sWave}, v2")
    e(f"  s_add_u32 s{sO}, s50, s6\n  s_addc_u32 s{sO+1}, s51, 0\n  s_mov_b32 s{sO+2}, 256\n  s_mov_b32 s{sO+3}, 0x20000")
    e(f"  s_mov_b32 s{sCnt}, 0")
    if warm & 1:
        e(f"  s_load_dword s78, s[{sV}:{sV+1}], 0")
    if warm & 2:
        e(f"  s_load_dword s79, s[{sO}:{sO+1}], 0")
    if warm & 4:
        e(f"  s_load_dword s73, s[{sDb}:{sDb+1}], 0")
    e(f"  s_mov_b32 s{sC}, {f2u(c):#x}\n  s_mov_b32 s{sMask}, 0xffff0000")
    e(f"  s_mov_b32 s{sB1}, 0xcccccccc\n  s_mov_b32 s{sB1+1}, 0xcccccccc")
    e(f"  s_mov_b32 s{sB0}, 0xaaaaaaaa\n  s_mov_b32 s{sB0+1}, 0xaaaaaaaa")
    e(f"  s_mul_i32 s3, s{sWave}, {ngroups*256}")
    e(f"  v_lshl_add_u32 v{vLds}, v{vLane}, 2, s3")
    e(f"  v_mov_b32 v{vM}, 0xff7fffff\n  v_mov_b32 v{vL}, 0")
    for i in range(8):
        e(f"  v_mov_b32 v{vAcc+i}, 0")
    if cfgc:
        e("  s_add_u32 s98, s64, 0x300000\n  s_addc_u32 s99, s65, 0\n  s_load_dwordx8 s[80:87], s[98:99], 0\n  s_waitcnt lgkmcnt(0)")
    e(f"  s_mov_b32 s{sDb+2}, 32\n  s_mov_b32 s{sDb+3}, 0x20000")
    e(f"  s_mov_b32 s{sLvl}, {init}\n  s_mov_b32 s{sVT}, 0\n  s_mov_b32 s{sK}, 0\n  s_mov_b32 s{sHave}, 0\n  s_mov_b32 s{sPhi}, 0")
    e(f"  v_and_b32 v{vPollA}, 7, v{vLane}\n  v_lshlrev_b32 v{vPollA}, 2, v{vPollA}")
    e(f"  s_lshl_b32 s3, s2, 2\n  v_lshl_add_u32 v{vPubA}, v{vLane}, 5, s3")
    e(f"  s_lshr_b32 s3, s2, 3\n  s_or_b32 s3, s3, s{sWave}\n  s_cmp_eq_u32 s3, 0\n  s_cselect_b32 s{sPubM}, {C['pm']}, 0")
    e(f"  s_and_b32 s3, s{sWave}, {pollspread-1}\n  s_lshl_b32 s{sPollM}, {C['qm']}, s3")
    if stamps:
        e(f"  s_waitcnt vmcnt({R-2})\n  s_memrealtime s[{sSt+2}:{sSt+3}]")

    def setflags():
        if brmode == 1:
            e(f"  s_cmp_eq_u32 s{sLvl}, 0\n  s_cselect_b64 vcc, -1, 0\n  s_cmp_eq_u32 s{sLvl}, 2")
    def waits_and_load():
        a, b = newlab(), newlab()
        if brmode == 1:
            e(f"  s_cbranch_vccnz {a}\n  s_cbranch_scc0 {b}")
        else:
            e(f"  s_cmp_eq_u32 s{sLvl}, 0\n  s_cbranch_scc1 {a}\n  s_cmp_eq_u32 s{sLvl}, 1\n  s_cbranch_scc1 {b}")
        e(f"  s_waitcnt vmcnt({Wlo-1})\n{b}:\n  s_waitcnt vmcnt({Wmid-1})\n{a}:\n  s_waitcnt vmcnt({Whi-1})")
        e(loadins())
        return after_load()
    def ctl_pre(kk):
        if kk % 8 == 2:
            e(f"  s_memrealtime s[{sT}:{sT+1}]")
    def ctl_post(kk):
        dirty = False
        if kk % 8 == 7:
            e(f"  s_add_u32 s{sVT}, s{sVT}, {C['U2']}")
            e("  s_waitcnt lgkmcnt(0)")
            e(f"  s_sub_u32 s{sPhi}, s{sVT}, s{sT}")
            e(f"  s_sub_u32 s3, s{sPhi}, s{sK}")
            e(f"  s_cmp_gt_i32 s3, {C['ta']}\n  s_cselect_b32 s{sLvl}, 1, 0")
            e(f"  s_cmp_gt_i32 s3, {C['tb']}\n  s_cselect_b32 s{sLvl}, 2, s{sLvl}")
            e(f"  s_cmp_eq_u32 s{sHave}, 0\n  s_cselect_b32 s{sLvl}, 1, s{sLvl}")
            if endhi:
                e(f"  s_cmp_ge_u32 s{sCnt}, {endhi}\n  s_cselect_b32 s{sLvl}, 0, s{sLvl}")
            if trace and kk == 15:
                e(f"  s_lshr_b32 m0, s{sCnt}, 1\n  s_nop 0\n  v_writelane_b32 v{vTr}, s{sT}, m0")
            dirty = True
        if kk == pubstep:
            l = newlab()
            e(f"  s_lshr_b32 s3, s{sCnt}, 1\n  s_bitcmp1_b32 s{sPubM}, s3\n  s_cbranch_scc0 {l}")
            e(f"  v_mov_b32 v{vX}, s{sPhi}")
            e(f"  buffer_store_dword v{vX}, v{vPubA}, s[{sDb}:{sDb+3}], 0 offen sc1")
            e(f"{l}:")
            dirty = True
        if kk == usestep:
            l = newlab()
            g = f"s_lshr_b32 s3, s{sCnt}, 1" + ("\n  s_sub_u32 s3, s3, 1" if usestep >= 8 else "")
            e(f"  {g}\n  s_bitcmp1_b32 s{sPollM}, s3\n  s_cbranch_scc0 {l}")
            e(f"  v_subrev_u32 v{vX}, s{sPhi}, v{vPoll}")
            e(f"  v_add_u32 v{vPoll}, {win}, v{vX}")
            e(f"  v_cmp_gt_u32 vcc, {2*win}, v{vPoll}")
            e(f"  s_nop 1")
            e(f"  v_cndmask_b32 v{vX}, 0, v{vX}, vcc")
            e(f"  v_mov_b32 v{vX+1}, v{vX}")
            e("  s_nop 1")
            for p in ["quad_perm:[1,0,3,2]", "quad_perm:[2,3,0,1]", "row_half_mirror"]:
                e(f"  v_add_u32_dpp v{vX}, v{vX}, v{vX} {p} {DPPF}")
                e(f"  v_min_i32_dpp v{vX+1}, v{vX+1}, v{vX+1} {p} {DPPF}\n  s_nop 0")
            e(f"  v_readfirstlane_b32 s3, v{vX}")
            e(f"  v_readfirstlane_b32 s4, v{vX+1}")
            e(f"  s_mov_b32 s{sHave}, 1")
            e(f"  s_mul_i32 s3, s3, {C['wmean']}\n  s_lshl_b32 s4, s4, 3\n  s_mul_i32 s4, s4, {C['wmin']}")
            e(f"  s_add_i32 s3, s3, s4\n  s_ashr_i32 s3, s3, 6")
            e(f"  s_add_u32 s{sK}, s{sPhi}, s3")
            if cfgc or coff:
                e(f"  s_add_u32 s{sK}, s{sK}, {C['coff']}")
            e(f"{l}:")
            dirty = True
        if kk == pollstep:
            l = newlab()
            e(f"  s_lshr_b32 s3, s{sCnt}, 1\n  s_bitcmp1_b32 s{sPollM}, s3\n  s_cbranch_scc0 {l}")
            e(f"  buffer_load_dword v{vPoll}, v{vPollA}, s[{sDb}:{sDb+3}], 0 offen sc1")
            e(f"{l}:")
            dirty = True
        return dirty

    def lvl1(j):
        e(f"  v_add_f32_dpp v{vB+j}, v{vA}, v{vA} row_ror:8 {DPPF}")
        e(f"  v_add_f32_dpp v{vB+j}, v{vA+1}, v{vA+1} row_ror:8 row_mask:0xf bank_mask:0xc")
    def lvl2(j):
        e(f"  v_add_f32_dpp v{vC+j}, v{vB}, v{vB} row_half_mirror {DPPF}")
        e(f"  v_add_f32_dpp v{vC+j}, v{vB+1}, v{vB+1} row_half_mirror row_mask:0xf bank_mask:0xa")
    def lvl3(j):
        e(f"  v_add_f32_dpp v{vC}, v{vC}, v{vC} quad_perm:[2,3,0,1] {DPPF}")
        e(f"  v_add_f32_dpp v{vC+1}, v{vC+1}, v{vC+1} quad_perm:[2,3,0,1] {DPPF}")
        e(f"  v_cndmask_b32 v{vD+j}, v{vC}, v{vC+1}, s[{sB1}:{sB1+1}]")
    def lvl4():
        e(f"  v_add_f32_dpp v{vD}, v{vD}, v{vD} quad_perm:[1,0,3,2] {DPPF}")
        e(f"  v_add_f32_dpp v{vD+1}, v{vD+1}, v{vD+1} quad_perm:[1,0,3,2] {DPPF}")
        e(f"  v_cndmask_b32 v{vT0}, v{vD}, v{vD+1}, s[{sB0}:{sB0+1}]")
    def combine_after(kk):
        if kk % 2 == 1:
            lvl1((kk >> 1) & 1)
        if kk % 4 == 3:
            e("  s_nop 1"); lvl2((kk >> 2) & 1)
        if kk % 8 == 7:
            e("  s_nop 1"); lvl3((kk >> 3) & 1)
        if kk == 15:
            e("  s_nop 1"); lvl4()
            e(f"  v_mul_f32 v{vT0}, s{sC}, v{vT0}")
            e(f"  ds_write_b32 v{vLds}, v{vT0}")
            e(f"  v_max_f32 v{vM}, v{vM}, v{vT0}")
            e(f"  v_add_u32 v{vLds}, 256, v{vLds}")
    def allreduce(v, op, t):
        for sh in (8, 4, 2, 1):
            e("  s_nop 1")
            e(f"  v_{op}_f32_dpp v{v}, v{v}, v{v} row_ror:{sh} {DPPF}")
        e(f"  v_mov_b32 v{t}, v{v}\n  s_nop 1\n  v_permlane16_swap_b32 v{v}, v{t}\n  s_nop 1\n  v_{op}_f32 v{v}, v{v}, v{t}")
        e(f"  v_mov_b32 v{t}, v{v}\n  s_nop 1\n  v_permlane32_swap_b32 v{v}, v{t}\n  s_nop 1\n  v_{op}_f32 v{v}, v{v}, v{t}")

    e(f"  s_mov_b32 s{sIter}, {ngroups}")
    e("L_kloop:")
    setflags()
    for kk in range(16):
        d1 = waits_and_load()
        ctl_pre(kk)
        if kk > 0 and (kk - 1) % 2 == 1:
            e("  s_nop 0")
            combine_after(kk - 1)
        a = vA + (kk & 1)
        for d in range(4):
            src2 = "0" if d == 0 else f"v{a}"
            e(f"  v_dot2_f32_bf16 v{a}, v{vR+4*(kk%R)+d}, v{vQ+d}, {src2}")
        if kk == 15:
            e("  s_nop 2")
            combine_after(15)
        d2 = ctl_post(kk)
        if (d1 or d2) and kk < 15:
            setflags()
    e(f"  s_sub_u32 s{sIter}, s{sIter}, 1\n  s_cmp_lg_u32 s{sIter}, 0\n  s_cbranch_scc1 L_kloop")
    e(f"  v_subrev_u32 v{vLds}, {ngroups*256}, v{vLds}")
    e(f"  ds_read_b32 v{vPn}, v{vLds}")
    allreduce(vM, "max", vT0)
    e(f"  s_mov_b32 s{sIter}, {ngroups}")
    e("L_vloop:")
    setflags()
    for kk in range(16):
        d1 = waits_and_load()
        ctl_pre(kk)
        if kk == 0:
            e("  s_waitcnt lgkmcnt(0)")
            e(f"  v_sub_f32 v{vP}, v{vPn}, v{vM}")
            e(f"  v_add_u32 v{vLds}, 256, v{vLds}")
            e(f"  v_exp_f32 v{vP}, v{vP}")
            e(f"  ds_read_b32 v{vPn}, v{vLds}")
            e(f"  s_nop 0")
            e(f"  v_add_f32 v{vL}, v{vL}, v{vP}")
        vr = vR + 4 * (kk % R)
        sel = kk & 1
        e(f"  v_mov_b32_dpp v{vPb+sel}, v{vP} row_newbcast:{bitrev4(kk)} {DPPF}")
        for d in range(4):
            e(f"  v_lshlrev_b32 v{vTmp+2*d}, 16, v{vr+d}")
            e(f"  v_and_b32 v{vTmp+2*d+1}, s{sMask}, v{vr+d}")
        for d in range(4):
            e(f"  v_pk_fma_f32 v[{vAcc+2*d}:{vAcc+2*d+1}], v[{vTmp+2*d}:{vTmp+2*d+1}], v[{vPb}:{vPb+1}], v[{vAcc+2*d}:{vAcc+2*d+1}] op_sel:[0,{sel},0] op_sel_hi:[1,{sel},1]")
        d2 = ctl_post(kk)
        if epi == 2 and kk == 9:
            l = newlab()
            stt = vTmp
            e(f"  s_cmp_lg_u32 s{sIter}, 1\n  s_cbranch_scc1 {l}")
            allreduce(vL, "add", vT0)
            e(f"  s_lshl_b32 s3, s{sWave}, 3\n  v_mov_b32 v2, s3\n  s_mov_b64 exec, 1")
            e(f"  ds_write_b64 v2, v[{vM}:{vM+1}] offset:{S_BYTES+NW*512}")
            e(f"  s_mov_b64 exec, -1\n  v_mov_b32 v2, 0\n  s_waitcnt lgkmcnt(0)\n  s_barrier")
            e(f"  ds_read_b128 v[{stt}:{stt+3}], v2 offset:{S_BYTES+NW*512}")
            e(f"  ds_read_b128 v[{stt+4}:{stt+7}], v2 offset:{S_BYTES+NW*512+16}")
            e("  s_waitcnt lgkmcnt(0)")
            e(f"  v_max_f32 v{vT0}, v{stt}, v{stt+2}\n  v_max3_f32 v{vT0}, v{vT0}, v{stt+4}, v{stt+6}")
            e(f"  v_sub_f32 v{vM}, v{vM}, v{vT0}")
            for w in range(NW):
                e(f"  v_sub_f32 v{stt+2*w}, v{stt+2*w}, v{vT0}")
            e(f"  v_exp_f32 v{vM}, v{vM}")
            for w in range(NW):
                e(f"  v_exp_f32 v{stt+2*w}, v{stt+2*w}")
            e("  s_nop 0")
            e(f"  v_mul_f32 v{vL}, v{stt}, v{stt+1}")
            for w in range(1, NW):
                e(f"  v_fmac_f32 v{vL}, v{stt+2*w}, v{stt+2*w+1}")
            e(f"  v_rcp_f32 v{vL}, v{vL}\n  s_nop 0\n  v_mul_f32 v{vL}, v{vL}, v{vM}")
            e(f"  v_and_b32 v2, 15, v{vLane}\n  v_lshlrev_b32 v2, 5, v2\n  v_lshrrev_b32 v{vT0}, 4, v{vLane}\n  v_lshl_add_u32 v2, v{vT0}, 3, v2")
            e(f"  s_lshl_b32 s3, s{sWave}, 9\n  v_add_u32 v{vLds}, s3, v2\n  v_lshrrev_b32 v{vM}, 1, v2")
            e(f"{l}:")
            d2 = True
        if (d1 or d2) and kk < 15:
            setflags()
    e(f"  s_sub_u32 s{sIter}, s{sIter}, 1\n  s_cmp_lg_u32 s{sIter}, 0\n  s_cbranch_scc1 L_vloop")
    if stamps:
        e(f"  s_memrealtime s[{sSt+4}:{sSt+5}]")
    if epi == 2:
        for i in range(4):
            e(f"  v_permlane32_swap_b32 v{vAcc+i}, v{vAcc+i+4}")
        e("  s_nop 0")
        for i in range(4):
            e(f"  v_add_f32 v{vAcc+i}, v{vAcc+i}, v{vAcc+i+4}")
        e("  s_nop 0")
        e(f"  v_permlane16_swap_b32 v{vAcc}, v{vAcc+2}\n  v_permlane16_swap_b32 v{vAcc+1}, v{vAcc+3}")
        e(f"  s_cmp_eq_u32 s{sWave}, 0")
        e(f"  v_add_f32 v{vAcc}, v{vAcc}, v{vAcc+2}\n  v_add_f32 v{vAcc+1}, v{vAcc+1}, v{vAcc+3}")
        e(f"  v_mul_f32 v{vAcc}, v{vAcc}, v{vL}\n  v_mul_f32 v{vAcc+1}, v{vAcc+1}, v{vL}")
        e("  s_cbranch_scc1 L_w0")
        e(f"  ds_write_b64 v{vLds}, v[{vAcc}:{vAcc+1}] offset:{S_BYTES}")
        e("  s_waitcnt lgkmcnt(0)\n  s_barrier\n  s_endpgm")
        e("L_w0:\n  s_barrier")
        for w in range(1, NW):
            e(f"  ds_read_b64 v[{vAcc+2*w}:{vAcc+2*w+1}], v2 offset:{S_BYTES+w*512}")
        e("  s_waitcnt lgkmcnt(1)")
        e(f"  v_pk_add_f32 v[{vAcc}:{vAcc+1}], v[{vAcc}:{vAcc+1}], v[{vAcc+2}:{vAcc+3}]")
        e(f"  v_pk_add_f32 v[{vAcc}:{vAcc+1}], v[{vAcc}:{vAcc+1}], v[{vAcc+4}:{vAcc+5}]")
        e("  s_waitcnt lgkmcnt(0)")
        e(f"  v_pk_add_f32 v[{vAcc}:{vAcc+1}], v[{vAcc}:{vAcc+1}], v[{vAcc+6}:{vAcc+7}]")
        e(f"  v_cvt_pk_bf16_f32 v{vAcc}, v{vAcc}, v{vAcc+1}")
        e(f"  buffer_store_dword v{vAcc}, v{vM}, s[{sO}:{sO+3}], 0 offen {outflags}")
    else:
        t = vTmp
        for i in range(4):
            e(f"  v_permlane32_swap_b32 v{vAcc+i}, v{vAcc+i+4}")
        e(f"  v_and_b32 v2, 15, v{vLane}\n  v_lshlrev_b32 v2, 5, v2\n  v_lshrrev_b32 v{t}, 4, v{vLane}\n  v_lshl_add_u32 v2, v{t}, 3, v2")
        for i in range(4):
            e(f"  v_add_f32 v{vAcc+i}, v{vAcc+i}, v{vAcc+i+4}")
        e(f"  s_lshl_b32 s3, s{sWave}, 9\n  v_add_u32 v2, s3, v2")
        e(f"  v_permlane16_swap_b32 v{vAcc}, v{vAcc+2}\n  v_permlane16_swap_b32 v{vAcc+1}, v{vAcc+3}")
        e("  s_nop 1")
        e(f"  v_add_f32 v{vAcc}, v{vAcc}, v{vAcc+2}\n  v_add_f32 v{vAcc+1}, v{vAcc+1}, v{vAcc+3}")
        e(f"  ds_write_b64 v2, v[{vAcc}:{vAcc+1}] offset:{S_BYTES}")
        allreduce(vL, "add", vT0)
        e(f"  s_lshl_b32 s3, s{sWave}, 3\n  v_mov_b32 v2, s3")
        e(f"  v_cmp_eq_u32 vcc, 0, v{vLane}\n  s_and_saveexec_b64 s[4:5], vcc")
        e(f"  ds_write_b64 v2, v[{vM}:{vM+1}] offset:{S_BYTES+NW*512}")
        e(f"  s_mov_b64 exec, s[4:5]")
        e("  s_waitcnt lgkmcnt(0)\n  s_barrier")
        e(f"  s_cmp_lg_u32 s{sWave}, 0\n  s_cbranch_scc1 L_end")
        stt = vTmp; dt = vAcc + 2
        dts = [18, 20, 22, 4]
        e(f"  v_mov_b32 v2, 0\n  v_lshlrev_b32 v{vT0}, 3, v{vLane}")
        for w in range(0, NW - 1, 2):
            e(f"  ds_read_b128 v[{stt+2*w}:{stt+2*w+3}], v2 offset:{S_BYTES+NW*512+w*8}")
        for w in range(NW):
            e(f"  ds_read_b64 v[{dts[w]}:{dts[w]+1}], v{vT0} offset:{S_BYTES+w*512}")
        e(f"  s_waitcnt lgkmcnt({NW})")
        e(f"  v_max_f32 v{vM}, v{stt}, v{stt+2}\n  v_max3_f32 v{vM}, v{vM}, v{stt+4}, v{stt+6}")
        for w in range(NW):
            e(f"  v_sub_f32 v{stt+2*w}, v{stt+2*w}, v{vM}")
        for w in range(NW):
            e(f"  v_exp_f32 v{stt+2*w}, v{stt+2*w}")
        e(f"  v_lshlrev_b32 v2, 2, v{vLane}")
        e(f"  v_mul_f32 v{vL}, v{stt}, v{stt+1}")
        for w in range(1, NW):
            e(f"  v_fmac_f32 v{vL}, v{stt+2*w}, v{stt+2*w+1}")
        e(f"  v_rcp_f32 v{vL}, v{vL}")
        e("  s_waitcnt lgkmcnt(0)")
        e(f"  v_mul_f32 v{vAcc}, v{stt}, v{dts[0]}\n  v_mul_f32 v{vAcc+1}, v{stt}, v{dts[0]+1}")
        for w in range(1, NW):
            e(f"  v_fmac_f32 v{vAcc}, v{stt+2*w}, v{dts[w]}\n  v_fmac_f32 v{vAcc+1}, v{stt+2*w}, v{dts[w]+1}")
        e(f"  v_mul_f32 v{vAcc}, v{vAcc}, v{vL}\n  v_mul_f32 v{vAcc+1}, v{vAcc+1}, v{vL}")
        e(f"  v_cvt_pk_bf16_f32 v{vAcc}, v{vAcc}, v{vAcc+1}")
        e(f"  buffer_store_dword v{vAcc}, v2, s[{sO}:{sO+3}], 0 offen {outflags}")

    if stamps:
        b = vR + 16
        e(f"  s_waitcnt vmcnt(0)\n  s_memrealtime s[{sSt+6}:{sSt+7}]")
        e("  s_getreg_b32 s66, hwreg(HW_REG_HW_ID)\n  s_getreg_b32 s67, hwreg(HW_REG_XCC_ID)")
        e("  s_lshl_b32 s3, s68, 6\n  s_add_u32 s64, s64, s3\n  s_addc_u32 s65, s65, 0\n  s_waitcnt lgkmcnt(0)")
        for i in range(8):
            e(f"  v_mov_b32 v{b+i}, s{sSt+i}")
        if trace:
            e(f"  s_mul_i32 s3, s68, 192\n  s_add_u32 s3, s3, 0x100000\n  v_lshl_add_u32 v2, v{vLane}, 2, s3\n  global_store_dword v2, v{vTr}, s[64:65]")
        e(f"  v_mov_b32 v{b+8}, s66\n  v_mov_b32 v{b+9}, s67\n  v_mov_b32 v2, 0")
        e(f"  v_cmp_eq_u32 vcc, 0, v{vLane}\n  s_and_saveexec_b64 s[4:5], vcc")
        e(f"  global_store_dwordx4 v2, v[{b}:{b+3}], s[64:65]\n  global_store_dwordx4 v2, v[{b+4}:{b+7}], s[64:65] offset:16\n  global_store_dwordx2 v2, v[{b+8}:{b+9}], s[64:65] offset:56")
    e("L_end:\n  s_endpgm")
    e('.section .rodata,"a"\n.p2align 6')
    e(f".amdhsa_kernel {NAME}_kernel\n  .amdhsa_next_free_vgpr {nv}\n  .amdhsa_next_free_sgpr {100 if cfgc else 80}\n  .amdhsa_accum_offset {(nv+3)//4*4}")
    e("  .amdhsa_group_segment_fixed_size 0\n  .amdhsa_kernarg_size 48\n  .amdhsa_user_sgpr_count 2\n  .amdhsa_user_sgpr_kernarg_segment_ptr 1\n  .amdhsa_system_sgpr_workgroup_id_x 1\n.end_amdhsa_kernel")
    return "\n".join(L) + "\n"

if __name__ == "__main__":
    kw = {}
    for a in sys.argv[2:]:
        k, v = a.split("=", 1)
        if v in ("True", "False"): v = v == "True"
        else:
            try: v = int(v, 0)
            except ValueError: v = v.replace("+", " ")
        kw[k] = v
    open(sys.argv[1], "w").write(gen(**kw))
```

```python
import sys, math, struct
NAME = "standalone__softmax_full_bidir__sampling"
HEADER = """; Decode attention (Sq=1), B=8 H=32 Skv=4096 D=128, bf16 in/out.  One workgroup (4 waves) per (b,h).
"""
def f2u(x):
    return struct.unpack("<I", struct.pack("<f", x))[0]
def bitrev4(x):
    return ((x & 1) << 3) | ((x & 2) << 1) | ((x & 4) >> 1) | ((x & 8) >> 3)

def gen(b0=13, b1=15, Whi=7, Wmid=5, Wlo=4, ta=-30, tb=30, U2=108, pubs="0.6.14.21.27", polld=1, pollspread=4,
        wmin=4, coff=0, win=2000, stamps=False, trace=False, cfgc=False, xa=0, xm=0, xb=0, brmode=1, epi=1,
        init=1, ldsk=False, outflags="", mfma=False, pollstep=1, usestep=12, pubstep=15, endhi=0, warm=0, pfd=0, pfall=False, qflags='', pad=0, midp='', lop='', hip='', UG=0):
    L = []; e = L.append
    NW, R = 4, 8
    region = 1 << 20
    ngroups = 16
    t2 = [b for b in range(12, 20) if b not in (b0, b1)][0]
    holes = (1 << b0) | (1 << b1) | (1 << t2) | 0xfff
    vOff, vLane = 1, 3
    vQ = 4
    vM, vL = 8, 9
    vP, vPn = 10, 11
    vPb = 12
    vLds, vT0 = 14, 15
    vAcc = 16
    vTmp = 24
    vA, vB, vC, vD = 24, 26, 28, 30
    vR = 32
    vPoll, vPollA, vPubA, vTr, vX = 64, 65, 66, 67, 68
    nv = 70
    sV, sQ, sO, sCur, sDb = 12, 16, 20, 24, 36
    sOff, sOff2, sCnt = 28, 29, 30
    sC, sMask, sIter, sWave = 40, 41, 42, 43
    sB1, sB0 = 32, 34
    sLvl, sVT, sK, sHave, sPhi, sPubM, sPollM, sT = 52, 53, 54, 55, 70, 71, 72, 74
    sSt = 56
    c = (128 ** -0.5) * math.log2(math.e)
    S_BYTES = 4096 * 4
    lds_bytes = S_BYTES + NW * 512 + NW * 8
    DPPF = "row_mask:0xf bank_mask:0xf"
    lab = {"n": 0}
    def newlab():
        lab["n"] += 1
        return f"L_{lab['n']}"
    pl = [int(g) for g in str(pubs).split(".")]
    pm = sum(1 << (g + 1) for g in pl) & 0xffffffff
    qm = sum(1 << (g + 1 + polld) for g in pl) & 0xffffffff
    C = dict(ta=ta, tb=tb, U2=U2, coff=coff, pm=f"{pm:#x}", qm=f"{qm:#x}", wmin=wmin, wmean=8 - wmin)
    if cfgc:
        C = dict(ta="s80", tb="s81", U2="s82", coff="s83", pm="s84", qm="s85", wmin="s86", wmean="s87")

    e(HEADER + f"; @launch grid=(256,1,1) block=(256,1,1) lds={lds_bytes}")
    e('.amdgcn_target "amdgcn-amd-amdhsa--gfx950"\n.text')
    e(f".globl {NAME}_kernel\n.p2align 8\n.type {NAME}_kernel,@function\n{NAME}_kernel:")
    if stamps:
        e(f"  s_memrealtime s[{sSt}:{sSt+1}]")
    e("  s_load_dwordx8 s[44:51], s[0:1], 0")
    e(f"  s_load_dwordx2 s[{sDb}:{sDb+1}], s[0:1], 32")
    e("  s_cmp_ge_u32 s2, 256\n  s_cbranch_scc1 L_end")
    if stamps:
        e(f"  s_load_dwordx2 s[64:65], s[0:1], 40\n  s_mov_b32 s68, s2")
    e(f"  v_and_b32 v{vLane}, 63, v0")
    e(f"  v_bfe_u32 v2, v0, 6, 1\n  v_lshlrev_b32 v{vOff}, 4, v{vLane}\n  v_lshl_add_u32 v{vOff}, v2, {b0}, v{vOff}")
    e(f"  v_lshrrev_b32 v2, 7, v0\n  v_lshl_add_u32 v{vOff}, v2, {b1}, v{vOff}")
    e(f"  s_lshl_b32 s5, s2, 20")
    e(f"  s_mov_b32 s{sCur+2}, {region:#x}\n  s_mov_b32 s{sCur+3}, 0x20000")
    if xm:
        e(f"  s_lshr_b32 s{sOff}, s2, {xa}\n  s_and_b32 s{sOff}, s{sOff}, {xm}\n  s_lshl_b32 s76, s{sOff}, {xb}")
        assert (xm << xb) & holes == 0
        e(f"  s_mov_b32 s77, 0\n  s_mov_b32 s{sOff}, s76")
    else:
        e(f"  s_mov_b32 s{sOff}, 0")
    e(f"  s_or_b32 s{sOff2}, s{sOff}, {1<<t2:#x}")
    e(f"  s_lshl_b32 s6, s2, 8\n  v_and_b32 v2, 15, v0\n  v_lshlrev_b32 v2, 4, v2")
    e(f"  s_mov_b32 s{sQ+2}, 256\n  s_mov_b32 s{sQ+3}, 0x20000")
    e("  s_waitcnt lgkmcnt(0)")
    e(f"  s_add_u32 s{sCur}, s46, s5\n  s_addc_u32 s{sCur+1}, s47, 0")

    st = {"i": 0}
    def nexttile():
        so = 77 if xm else sOff
        e(f"  s_or_b32 s{so}, s{so}, {holes:#x}\n  s_add_u32 s{so}, s{so}, 1\n  s_and_b32 s{so}, s{so}, {(region-1) & ~holes:#x}")
        if xm:
            e(f"  s_xor_b32 s{sOff}, s77, s76")
        e(f"  s_or_b32 s{sOff2}, s{sOff}, {1<<t2:#x}")
        e(f"  s_add_u32 s{sCnt}, s{sCnt}, 1")
        e(f"  s_cmp_eq_u32 s{sCnt}, 32")
        e(f"  s_cselect_b64 s[{sCur}:{sCur+1}], s[{sV}:{sV+1}], s[{sCur}:{sCur+1}]")
        e(f"  s_cmp_ge_u32 s{sCnt}, 64")
        e(f"  s_cselect_b32 s{sCur+2}, 0, s{sCur+2}")
    def loadins():
        slot = st["i"] % R
        so = sOff if slot < 4 else sOff2
        return f"  buffer_load_dwordx4 v[{vR+4*slot}:{vR+4*slot+3}], v{vOff}, s[{sCur}:{sCur+3}], s{so} offen offset:{(slot%4)*1024} nt"
    def after_load():
        st["i"] += 1
        if st["i"] % R == 0:
            nexttile()
            return True
        return False
    e(loadins()); after_load()
    e(f"  s_add_u32 s{sQ}, s44, s6\n  s_addc_u32 s{sQ+1}, s45, 0")
    e(f"  buffer_load_dwordx4 v[{vQ}:{vQ+3}], v2, s[{sQ}:{sQ+3}], 0 offen {qflags}")
    for _ in range(R - 2):
        e(loadins()); after_load()
    e(f"  v_lshrrev_b32 v2, 6, v0")
    e(f"  s_add_u32 s{sV}, s48, s5\n  s_addc_u32 s{sV+1}, s49, 0")
    e(f"  v_readfirstlane_b32 s{sWave}, v2")
    e(f"  s_add_u32 s{sO}, s50, s6\n  s_addc_u32 s{sO+1}, s51, 0\n  s_mov_b32 s{sO+2}, 256\n  s_mov_b32 s{sO+3}, 0x20000")
    e(f"  s_mov_b32 s{sCnt}, 0")
    if pfd:
        e(f"  s_mov_b64 s[10:11], s[{sCur}:{sCur+1}]")
        for i in range(1, pfd):
            if xm:
                e(f"  s_xor_b32 s3, s76, {i<<16:#x}\n  s_load_dword s69, s[10:11], s3")
            else:
                e(f"  s_load_dword s69, s[10:11], {i<<16:#x}")
    if warm & 1:
        e(f"  s_load_dword s78, s[{sV}:{sV+1}], 0")
    if warm & 2:
        e(f"  s_load_dword s79, s[{sO}:{sO+1}], 0")
    if warm & 4:
        e(f"  s_load_dword s73, s[{sDb}:{sDb+1}], 0")
    e(f"  s_mov_b32 s{sC}, {f2u(c):#x}\n  s_mov_b32 s{sMask}, 0xffff0000")
    e(f"  s_mov_b32 s{sB1}, 0xcccccccc\n  s_mov_b32 s{sB1+1}, 0xcccccccc")
    e(f"  s_mov_b32 s{sB0}, 0xaaaaaaaa\n  s_mov_b32 s{sB0+1}, 0xaaaaaaaa")
    e(f"  s_mul_i32 s3, s{sWave}, {ngroups*256}")
    e(f"  v_lshl_add_u32 v{vLds}, v{vLane}, 2, s3")
    e(f"  v_mov_b32 v{vM}, 0xff7fffff\n  v_mov_b32 v{vL}, 0")
    for i in range(8):
        e(f"  v_mov_b32 v{vAcc+i}, 0")
    if cfgc:
        e("  s_add_u32 s98, s64, 0x300000\n  s_addc_u32 s99, s65, 0\n  s_load_dwordx8 s[80:87], s[98:99], 0\n  s_waitcnt lgkmcnt(0)")
    e(f"  s_mov_b32 s{sDb+2}, 32\n  s_mov_b32 s{sDb+3}, 0x20000")
    e(f"  s_mov_b32 s{sLvl}, {init}\n  s_mov_b32 s{sVT}, 0\n  s_mov_b32 s{sK}, 0\n  s_mov_b32 s{sHave}, 0\n  s_mov_b32 s{sPhi}, 0")
    e(f"  v_and_b32 v{vPollA}, 7, v{vLane}\n  v_lshlrev_b32 v{vPollA}, 2, v{vPollA}")
    e(f"  s_lshl_b32 s3, s2, 2\n  v_lshl_add_u32 v{vPubA}, v{vLane}, 5, s3")
    e(f"  s_lshr_b32 s3, s2, 3\n  s_or_b32 s3, s3, s{sWave}\n  s_cmp_eq_u32 s3, 0\n  s_cselect_b32 s{sPubM}, {C['pm']}, 0")
    e(f"  s_and_b32 s3, s{sWave}, {pollspread-1}\n  s_lshl_b32 s{sPollM}, {C['qm']}, s3")
    if stamps:
        e(f"  s_waitcnt vmcnt({R-2})\n  s_memrealtime s[{sSt+2}:{sSt+3}]")

    def setflags():
        if brmode == 1:
            e(f"  s_cmp_eq_u32 s{sLvl}, 0\n  s_cselect_b64 vcc, -1, 0\n  s_cmp_eq_u32 s{sLvl}, 2")
    def waits_and_load():
        a, b = newlab(), newlab()
        if brmode == 1:
            e(f"  s_cbranch_vccnz {a}\n  s_cbranch_scc0 {b}")
        else:
            e(f"  s_cmp_eq_u32 s{sLvl}, 0\n  s_cbranch_scc1 {a}\n  s_cmp_eq_u32 s{sLvl}, 1\n  s_cbranch_scc1 {b}")
        i = st["i"]
        wm = int(str(midp)[i % len(str(midp))]) if midp else Wmid
        wl = int(str(lop)[i % len(str(lop))]) if lop else Wlo
        wh = int(str(hip)[i % len(str(hip))]) if hip else Whi
        e(f"  s_waitcnt vmcnt({wl-1})\n{b}:\n  s_waitcnt vmcnt({wm-1})\n{a}:\n  s_waitcnt vmcnt({wh-1})")
        e(loadins())
        return after_load()
    def ctl_pre(kk):
        if kk % 8 == 2:
            e(f"  s_memrealtime s[{sT}:{sT+1}]")
    def ctl_post(kk):
        dirty = False
        if kk % 8 == 7:
            inc = C['U2'] if not UG else (UG // 2 if kk == 7 else UG - UG // 2)
            e(f"  s_add_u32 s{sVT}, s{sVT}, {inc}")
            e("  s_waitcnt lgkmcnt(0)")
            e(f"  s_sub_u32 s{sPhi}, s{sVT}, s{sT}")
            e(f"  s_sub_u32 s3, s{sPhi}, s{sK}")
            e(f"  s_cmp_gt_i32 s3, {C['ta']}\n  s_cselect_b32 s{sLvl}, 1, 0")
            e(f"  s_cmp_gt_i32 s3, {C['tb']}\n  s_cselect_b32 s{sLvl}, 2, s{sLvl}")
            e(f"  s_cmp_eq_u32 s{sHave}, 0\n  s_cselect_b32 s{sLvl}, 1, s{sLvl}")
            if endhi:
                e(f"  s_cmp_ge_u32 s{sCnt}, {endhi}\n  s_cselect_b32 s{sLvl}, 0, s{sLvl}")
            if pfd and kk == 7:
                l = newlab()
                e(f"  s_lshr_b32 s3, s{sCnt}, 1\n  s_add_u32 s3, s3, {pfd}")
                if not pfall:
                    e(f"  s_xor_b32 s4, s3, s{sWave}\n  s_and_b32 s4, s4, 3\n  s_cbranch_scc1 {l}")
                e(f"  s_cmp_ge_u32 s3, 32\n  s_cbranch_scc1 {l}")
                e(f"  s_cmp_ge_u32 s3, 16\n  s_cselect_b64 s[8:9], s[{sV}:{sV+1}], s[10:11]")
                e(f"  s_and_b32 s3, s3, 15\n  s_lshl_b32 s3, s3, 16")
                if xm:
                    e(f"  s_xor_b32 s3, s3, s76")
                e(f"  s_load_dword s69, s[8:9], s3")
                e(f"{l}:")
            if trace and kk == 15:
                e(f"  s_lshr_b32 m0, s{sCnt}, 1\n  s_nop 0\n  v_writelane_b32 v{vTr}, s{sT}, m0")
            dirty = True
        if kk == pubstep:
            l = newlab()
            e(f"  s_lshr_b32 s3, s{sCnt}, 1\n  s_bitcmp1_b32 s{sPubM}, s3\n  s_cbranch_scc0 {l}")
            e(f"  v_mov_b32 v{vX}, s{sPhi}")
            e(f"  buffer_store_dword v{vX}, v{vPubA}, s[{sDb}:{sDb+3}], 0 offen sc1")
            e(f"{l}:")
            dirty = True
        if kk == usestep:
            l = newlab()
            g = f"s_lshr_b32 s3, s{sCnt}, 1" + ("\n  s_sub_u32 s3, s3, 1" if usestep >= 8 else "")
            e(f"  {g}\n  s_bitcmp1_b32 s{sPollM}, s3\n  s_cbranch_scc0 {l}")
            e(f"  v_subrev_u32 v{vX}, s{sPhi}, v{vPoll}")
            e(f"  v_add_u32 v{vPoll}, {win}, v{vX}")
            e(f"  v_cmp_gt_u32 vcc, {2*win}, v{vPoll}")
            e(f"  s_nop 1")
            e(f"  v_cndmask_b32 v{vX}, 0, v{vX}, vcc")
            e(f"  v_mov_b32 v{vX+1}, v{vX}")
            e("  s_nop 1")
            for p in ["quad_perm:[1,0,3,2]", "quad_perm:[2,3,0,1]", "row_half_mirror"]:
                e(f"  v_add_u32_dpp v{vX}, v{vX}, v{vX} {p} {DPPF}")
                e(f"  v_min_i32_dpp v{vX+1}, v{vX+1}, v{vX+1} {p} {DPPF}\n  s_nop 0")
            e(f"  v_readfirstlane_b32 s3, v{vX}")
            e(f"  v_readfirstlane_b32 s4, v{vX+1}")
            e(f"  s_mov_b32 s{sHave}, 1")
            e(f"  s_mul_i32 s3, s3, {C['wmean']}\n  s_lshl_b32 s4, s4, 3\n  s_mul_i32 s4, s4, {C['wmin']}")
            e(f"  s_add_i32 s3, s3, s4\n  s_ashr_i32 s3, s3, 6")
            e(f"  s_add_u32 s{sK}, s{sPhi}, s3")
            if cfgc or coff:
                e(f"  s_add_u32 s{sK}, s{sK}, {C['coff']}")
            e(f"{l}:")
            dirty = True
        if kk == pollstep:
            l = newlab()
            e(f"  s_lshr_b32 s3, s{sCnt}, 1\n  s_bitcmp1_b32 s{sPollM}, s3\n  s_cbranch_scc0 {l}")
            e(f"  buffer_load_dword v{vPoll}, v{vPollA}, s[{sDb}:{sDb+3}], 0 offen sc1")
            e(f"{l}:")
            dirty = True
        return dirty

    def lvl1(j):
        e(f"  v_add_f32_dpp v{vB+j}, v{vA}, v{vA} row_ror:8 {DPPF}")
        e(f"  v_add_f32_dpp v{vB+j}, v{vA+1}, v{vA+1} row_ror:8 row_mask:0xf bank_mask:0xc")
    def lvl2(j):
        e(f"  v_add_f32_dpp v{vC+j}, v{vB}, v{vB} row_half_mirror {DPPF}")
        e(f"  v_add_f32_dpp v{vC+j}, v{vB+1}, v{vB+1} row_half_mirror row_mask:0xf bank_mask:0xa")
    def lvl3(j):
        e(f"  v_add_f32_dpp v{vC}, v{vC}, v{vC} quad_perm:[2,3,0,1] {DPPF}")
        e(f"  v_add_f32_dpp v{vC+1}, v{vC+1}, v{vC+1} quad_perm:[2,3,0,1] {DPPF}")
        e(f"  v_cndmask_b32 v{vD+j}, v{vC}, v{vC+1}, s[{sB1}:{sB1+1}]")
    def lvl4():
        e(f"  v_add_f32_dpp v{vD}, v{vD}, v{vD} quad_perm:[1,0,3,2] {DPPF}")
        e(f"  v_add_f32_dpp v{vD+1}, v{vD+1}, v{vD+1} quad_perm:[1,0,3,2] {DPPF}")
        e(f"  v_cndmask_b32 v{vT0}, v{vD}, v{vD+1}, s[{sB0}:{sB0+1}]")
    def combine_after(kk):
        if kk % 2 == 1:
            lvl1((kk >> 1) & 1)
        if kk % 4 == 3:
            e("  s_nop 1"); lvl2((kk >> 2) & 1)
        if kk % 8 == 7:
            e("  s_nop 1"); lvl3((kk >> 3) & 1)
        if kk == 15:
            e("  s_nop 1"); lvl4()
            e(f"  v_mul_f32 v{vT0}, s{sC}, v{vT0}")
            e(f"  ds_write_b32 v{vLds}, v{vT0}")
            e(f"  v_max_f32 v{vM}, v{vM}, v{vT0}")
            e(f"  v_add_u32 v{vLds}, 256, v{vLds}")
    def allreduce(v, op, t):
        for sh in (8, 4, 2, 1):
            e("  s_nop 1")
            e(f"  v_{op}_f32_dpp v{v}, v{v}, v{v} row_ror:{sh} {DPPF}")
        e(f"  v_mov_b32 v{t}, v{v}\n  s_nop 1\n  v_permlane16_swap_b32 v{v}, v{t}\n  s_nop 1\n  v_{op}_f32 v{v}, v{v}, v{t}")
        e(f"  v_mov_b32 v{t}, v{v}\n  s_nop 1\n  v_permlane32_swap_b32 v{v}, v{t}\n  s_nop 1\n  v_{op}_f32 v{v}, v{v}, v{t}")

    for _ in range(pad):
        e("  s_nop 0")
    e(f"  s_mov_b32 s{sIter}, {ngroups}")
    e("L_kloop:")
    setflags()
    for kk in range(16):
        d1 = waits_and_load()
        ctl_pre(kk)
        if kk > 0 and (kk - 1) % 2 == 1:
            e("  s_nop 0")
            combine_after(kk - 1)
        a = vA + (kk & 1)
        for d in range(4):
            src2 = "0" if d == 0 else f"v{a}"
            e(f"  v_dot2_f32_bf16 v{a}, v{vR+4*(kk%R)+d}, v{vQ+d}, {src2}")
        if kk == 15:
            e("  s_nop 2")
            combine_after(15)
        d2 = ctl_post(kk)
        if (d1 or d2) and kk < 15:
            setflags()
    e(f"  s_sub_u32 s{sIter}, s{sIter}, 1\n  s_cmp_lg_u32 s{sIter}, 0\n  s_cbranch_scc1 L_kloop")
    e(f"  v_subrev_u32 v{vLds}, {ngroups*256}, v{vLds}")
    e(f"  ds_read_b32 v{vPn}, v{vLds}")
    allreduce(vM, "max", vT0)
    e(f"  s_mov_b32 s{sIter}, {ngroups}")
    e("L_vloop:")
    setflags()
    for kk in range(16):
        d1 = waits_and_load()
        ctl_pre(kk)
        if kk == 0:
            e("  s_waitcnt lgkmcnt(0)")
            e(f"  v_sub_f32 v{vP}, v{vPn}, v{vM}")
            e(f"  v_add_u32 v{vLds}, 256, v{vLds}")
            e(f"  v_exp_f32 v{vP}, v{vP}")
            e(f"  ds_read_b32 v{vPn}, v{vLds}")
            e(f"  s_nop 0")
            e(f"  v_add_f32 v{vL}, v{vL}, v{vP}")
        vr = vR + 4 * (kk % R)
        sel = kk & 1
        e(f"  v_mov_b32_dpp v{vPb+sel}, v{vP} row_newbcast:{bitrev4(kk)} {DPPF}")
        for d in range(4):
            e(f"  v_lshlrev_b32 v{vTmp+2*d}, 16, v{vr+d}")
            e(f"  v_and_b32 v{vTmp+2*d+1}, s{sMask}, v{vr+d}")
        for d in range(4):
            e(f"  v_pk_fma_f32 v[{vAcc+2*d}:{vAcc+2*d+1}], v[{vTmp+2*d}:{vTmp+2*d+1}], v[{vPb}:{vPb+1}], v[{vAcc+2*d}:{vAcc+2*d+1}] op_sel:[0,{sel},0] op_sel_hi:[1,{sel},1]")
        d2 = ctl_post(kk)
        if epi == 2 and kk == 9:
            l = newlab()
            stt = vTmp
            e(f"  s_cmp_lg_u32 s{sIter}, 1\n  s_cbranch_scc1 {l}")
            allreduce(vL, "add", vT0)
            e(f"  s_lshl_b32 s3, s{sWave}, 3\n  v_mov_b32 v2, s3\n  s_mov_b64 exec, 1")
            e(f"  ds_write_b64 v2, v[{vM}:{vM+1}] offset:{S_BYTES+NW*512}")
            e(f"  s_mov_b64 exec, -1\n  v_mov_b32 v2, 0\n  s_waitcnt lgkmcnt(0)\n  s_barrier")
            e(f"  ds_read_b128 v[{stt}:{stt+3}], v2 offset:{S_BYTES+NW*512}")
            e(f"  ds_read_b128 v[{stt+4}:{stt+7}], v2 offset:{S_BYTES+NW*512+16}")
            e("  s_waitcnt lgkmcnt(0)")
            e(f"  v_max_f32 v{vT0}, v{stt}, v{stt+2}\n  v_max3_f32 v{vT0}, v{vT0}, v{stt+4}, v{stt+6}")
            e(f"  v_sub_f32 v{vM}, v{vM}, v{vT0}")
            for w in range(NW):
                e(f"  v_sub_f32 v{stt+2*w}, v{stt+2*w}, v{vT0}")
            e(f"  v_exp_f32 v{vM}, v{vM}")
            for w in range(NW):
                e(f"  v_exp_f32 v{stt+2*w}, v{stt+2*w}")
            e("  s_nop 0")
            e(f"  v_mul_f32 v{vL}, v{stt}, v{stt+1}")
            for w in range(1, NW):
                e(f"  v_fmac_f32 v{vL}, v{stt+2*w}, v{stt+2*w+1}")
            e(f"  v_rcp_f32 v{vL}, v{vL}\n  s_nop 0\n  v_mul_f32 v{vL}, v{vL}, v{vM}")
            e(f"  v_and_b32 v2, 15, v{vLane}\n  v_lshlrev_b32 v2, 5, v2\n  v_lshrrev_b32 v{vT0}, 4, v{vLane}\n  v_lshl_add_u32 v2, v{vT0}, 3, v2")
            e(f"  s_lshl_b32 s3, s{sWave}, 9\n  v_add_u32 v{vLds}, s3, v2\n  v_lshrrev_b32 v{vM}, 1, v2")
            e(f"{l}:")
            d2 = True
        if (d1 or d2) and kk < 15:
            setflags()
    e(f"  s_sub_u32 s{sIter}, s{sIter}, 1\n  s_cmp_lg_u32 s{sIter}, 0\n  s_cbranch_scc1 L_vloop")
    if stamps:
        e(f"  s_memrealtime s[{sSt+4}:{sSt+5}]")
    if epi == 2:
        for i in range(4):
            e(f"  v_permlane32_swap_b32 v{vAcc+i}, v{vAcc+i+4}")
        e("  s_nop 0")
        for i in range(4):
            e(f"  v_add_f32 v{vAcc+i}, v{vAcc+i}, v{vAcc+i+4}")
        e("  s_nop 0")
        e(f"  v_permlane16_swap_b32 v{vAcc}, v{vAcc+2}\n  v_permlane16_swap_b32 v{vAcc+1}, v{vAcc+3}")
        e(f"  s_cmp_eq_u32 s{sWave}, 0")
        e(f"  v_add_f32 v{vAcc}, v{vAcc}, v{vAcc+2}\n  v_add_f32 v{vAcc+1}, v{vAcc+1}, v{vAcc+3}")
        e(f"  v_mul_f32 v{vAcc}, v{vAcc}, v{vL}\n  v_mul_f32 v{vAcc+1}, v{vAcc+1}, v{vL}")
        e("  s_cbranch_scc1 L_w0")
        e(f"  ds_write_b64 v{vLds}, v[{vAcc}:{vAcc+1}] offset:{S_BYTES}")
        e("  s_waitcnt lgkmcnt(0)\n  s_barrier\n  s_endpgm")
        e("L_w0:\n  s_barrier")
        for w in range(1, NW):
            e(f"  ds_read_b64 v[{vAcc+2*w}:{vAcc+2*w+1}], v2 offset:{S_BYTES+w*512}")
        e("  s_waitcnt lgkmcnt(1)")
        e(f"  v_pk_add_f32 v[{vAcc}:{vAcc+1}], v[{vAcc}:{vAcc+1}], v[{vAcc+2}:{vAcc+3}]")
        e(f"  v_pk_add_f32 v[{vAcc}:{vAcc+1}], v[{vAcc}:{vAcc+1}], v[{vAcc+4}:{vAcc+5}]")
        e("  s_waitcnt lgkmcnt(0)")
        e(f"  v_pk_add_f32 v[{vAcc}:{vAcc+1}], v[{vAcc}:{vAcc+1}], v[{vAcc+6}:{vAcc+7}]")
        e(f"  v_cvt_pk_bf16_f32 v{vAcc}, v{vAcc}, v{vAcc+1}")
        e(f"  buffer_store_dword v{vAcc}, v{vM}, s[{sO}:{sO+3}], 0 offen {outflags}")
    else:
        t = vTmp
        for i in range(4):
            e(f"  v_permlane32_swap_b32 v{vAcc+i}, v{vAcc+i+4}")
        e(f"  v_and_b32 v2, 15, v{vLane}\n  v_lshlrev_b32 v2, 5, v2\n  v_lshrrev_b32 v{t}, 4, v{vLane}\n  v_lshl_add_u32 v2, v{t}, 3, v2")
        for i in range(4):
            e(f"  v_add_f32 v{vAcc+i}, v{vAcc+i}, v{vAcc+i+4}")
        e(f"  s_lshl_b32 s3, s{sWave}, 9\n  v_add_u32 v2, s3, v2")
        e(f"  v_permlane16_swap_b32 v{vAcc}, v{vAcc+2}\n  v_permlane16_swap_b32 v{vAcc+1}, v{vAcc+3}")
        e("  s_nop 1")
        e(f"  v_add_f32 v{vAcc}, v{vAcc}, v{vAcc+2}\n  v_add_f32 v{vAcc+1}, v{vAcc+1}, v{vAcc+3}")
        e(f"  ds_write_b64 v2, v[{vAcc}:{vAcc+1}] offset:{S_BYTES}")
        allreduce(vL, "add", vT0)
        e(f"  s_lshl_b32 s3, s{sWave}, 3\n  v_mov_b32 v2, s3")
        e(f"  v_cmp_eq_u32 vcc, 0, v{vLane}\n  s_and_saveexec_b64 s[4:5], vcc")
        e(f"  ds_write_b64 v2, v[{vM}:{vM+1}] offset:{S_BYTES+NW*512}")
        e(f"  s_mov_b64 exec, s[4:5]")
        e("  s_waitcnt lgkmcnt(0)\n  s_barrier")
        e(f"  s_cmp_lg_u32 s{sWave}, 0\n  s_cbranch_scc1 L_end")
        stt = vTmp; dt = vAcc + 2
        dts = [18, 20, 22, 4]
        e(f"  v_mov_b32 v2, 0\n  v_lshlrev_b32 v{vT0}, 3, v{vLane}")
        for w in range(0, NW - 1, 2):
            e(f"  ds_read_b128 v[{stt+2*w}:{stt+2*w+3}], v2 offset:{S_BYTES+NW*512+w*8}")
        for w in range(NW):
            e(f"  ds_read_b64 v[{dts[w]}:{dts[w]+1}], v{vT0} offset:{S_BYTES+w*512}")
        e(f"  s_waitcnt lgkmcnt({NW})")
        e(f"  v_max_f32 v{vM}, v{stt}, v{stt+2}\n  v_max3_f32 v{vM}, v{vM}, v{stt+4}, v{stt+6}")
        for w in range(NW):
            e(f"  v_sub_f32 v{stt+2*w}, v{stt+2*w}, v{vM}")
        for w in range(NW):
            e(f"  v_exp_f32 v{stt+2*w}, v{stt+2*w}")
        e(f"  v_lshlrev_b32 v2, 2, v{vLane}")
        e(f"  v_mul_f32 v{vL}, v{stt}, v{stt+1}")
        for w in range(1, NW):
            e(f"  v_fmac_f32 v{vL}, v{stt+2*w}, v{stt+2*w+1}")
        e(f"  v_rcp_f32 v{vL}, v{vL}")
        e("  s_waitcnt lgkmcnt(0)")
        e(f"  v_mul_f32 v{vAcc}, v{stt}, v{dts[0]}\n  v_mul_f32 v{vAcc+1}, v{stt}, v{dts[0]+1}")
        for w in range(1, NW):
            e(f"  v_fmac_f32 v{vAcc}, v{stt+2*w}, v{dts[w]}\n  v_fmac_f32 v{vAcc+1}, v{stt+2*w}, v{dts[w]+1}")
        e(f"  v_mul_f32 v{vAcc}, v{vAcc}, v{vL}\n  v_mul_f32 v{vAcc+1}, v{vAcc+1}, v{vL}")
        e(f"  v_cvt_pk_bf16_f32 v{vAcc}, v{vAcc}, v{vAcc+1}")
        e(f"  buffer_store_dword v{vAcc}, v2, s[{sO}:{sO+3}], 0 offen {outflags}")

    if stamps:
        b = vR + 16
        e(f"  s_waitcnt vmcnt(0)\n  s_memrealtime s[{sSt+6}:{sSt+7}]")
        e("  s_getreg_b32 s66, hwreg(HW_REG_HW_ID)\n  s_getreg_b32 s67, hwreg(HW_REG_XCC_ID)")
        e("  s_lshl_b32 s3, s68, 6\n  s_add_u32 s64, s64, s3\n  s_addc_u32 s65, s65, 0\n  s_waitcnt lgkmcnt(0)")
        for i in range(8):
            e(f"  v_mov_b32 v{b+i}, s{sSt+i}")
        if trace:
            e(f"  s_mul_i32 s3, s68, 192\n  s_add_u32 s3, s3, 0x100000\n  v_lshl_add_u32 v2, v{vLane}, 2, s3\n  global_store_dword v2, v{vTr}, s[64:65]")
        e(f"  v_mov_b32 v{b+8}, s66\n  v_mov_b32 v{b+9}, s67\n  v_mov_b32 v2, 0")
        e(f"  v_cmp_eq_u32 vcc, 0, v{vLane}\n  s_and_saveexec_b64 s[4:5], vcc")
        e(f"  global_store_dwordx4 v2, v[{b}:{b+3}], s[64:65]\n  global_store_dwordx4 v2, v[{b+4}:{b+7}], s[64:65] offset:16\n  global_store_dwordx2 v2, v[{b+8}:{b+9}], s[64:65] offset:56")
    e("L_end:\n  s_endpgm")
    e('.section .rodata,"a"\n.p2align 6')
    e(f".amdhsa_kernel {NAME}_kernel\n  .amdhsa_next_free_vgpr {nv}\n  .amdhsa_next_free_sgpr {100 if cfgc else 80}\n  .amdhsa_accum_offset {(nv+3)//4*4}")
    e("  .amdhsa_group_segment_fixed_size 0\n  .amdhsa_kernarg_size 48\n  .amdhsa_user_sgpr_count 2\n  .amdhsa_user_sgpr_kernarg_segment_ptr 1\n  .amdhsa_system_sgpr_workgroup_id_x 1\n.end_amdhsa_kernel")
    return "\n".join(L) + "\n"

if __name__ == "__main__":
    kw = {}
    for a in sys.argv[2:]:
        k, v = a.split("=", 1)
        if v in ("True", "False"): v = v == "True"
        else:
            try: v = int(v, 0)
            except ValueError: v = v.replace("+", " ")
        kw[k] = v
    open(sys.argv[1], "w").write(gen(**kw))
```

```python
import sys, math, struct
NAME = "standalone__softmax_full_bidir__sampling"
HEADER = """; Decode attention (Sq=1), B=8 H=32 Skv=4096 D=128, bf16 in/out.  One workgroup (4 waves) per (b,h).
"""
def f2u(x):
    return struct.unpack("<I", struct.pack("<f", x))[0]
def bitrev4(x):
    return ((x & 1) << 3) | ((x & 2) << 1) | ((x & 4) >> 1) | ((x & 8) >> 3)

def gen(b0=13, b1=15, Whi=7, Wmid=5, Wlo=4, ta=-30, tb=30, U2=108, pubs="0.6.14.21.27", polld=1, pollspread=4,
        wmin=4, coff=0, win=2000, stamps=False, trace=False, cfgc=False, xa=0, xm=0, xb=0, brmode=1, epi=1,
        init=1, ldsk=False, outflags="", mfma=False, pollstep=1, usestep=12, pubstep=15, endhi=0, warm=0, pfd=0, pfall=False, qflags='', pad=0, midp='', lop='', hip='', UG=0, evt=0, PP=4, corr=0, lastpub=29, evtfix=False, g1=9, cpf=0, cpfpos=3, adapt=False, th1=-15, th2=-30, up=1, dn=2, dmax=3):
    L = []; e = L.append
    NW, R = 4, 8
    region = 1 << 20
    ngroups = 16
    t2 = [b for b in range(12, 20) if b not in (b0, b1, g1)][0]
    holes = (1 << b0) | (1 << b1) | (1 << t2) | (1 << g1) | 0xdff
    assert holes & 0x200 and bin(holes & 0xfffff).count("1") == 15
    vOff, vLane = 1, 3
    vQ = 4
    vM, vL = 8, 9
    vP, vPn = 10, 11
    vPb = 12
    vLds, vT0 = 14, 15
    vAcc = 16
    vTmp = 24
    vA, vB, vC, vD = 24, 26, 28, 30
    vR = 32
    vPoll, vPollA, vPubA, vTr, vX = 64, 65, 66, 67, 68
    nv = 70
    sV, sQ, sO, sCur, sDb = 12, 16, 20, 24, 36
    sOff, sOff2, sCnt = 28, 29, 30
    sC, sMask, sIter, sWave = 40, 41, 42, 43
    sB1, sB0 = 32, 34
    sLvl, sVT, sK, sHave, sPhi, sPubM, sPollM, sT = 52, 53, 54, 55, 70, 71, 72, 74
    sSt = 56
    c = (128 ** -0.5) * math.log2(math.e)
    S_BYTES = 4096 * 4
    lds_bytes = S_BYTES + NW * 512 + NW * 8
    DPPF = "row_mask:0xf bank_mask:0xf"
    lab = {"n": 0}
    def newlab():
        lab["n"] += 1
        return f"L_{lab['n']}"
    pl = [int(g) for g in str(pubs).split(".")]
    pm = sum(1 << (g + 1) for g in pl) & 0xffffffff
    qm = sum(1 << (g + 1 + polld) for g in pl) & 0xffffffff
    if evt and not evtfix:
        pm = sum(1 << (g + 1) for g in range(0, lastpub + 1)) & 0xffffffff
        qm = sum(1 << g for g in range(2, 32, PP)) & 0xffffffff
        pollspread = PP
    C = dict(ta=ta, tb=tb, U2=U2, coff=coff, pm=f"{pm:#x}", qm=f"{qm:#x}", wmin=wmin, wmean=8 - wmin)
    if cfgc:
        C = dict(ta="s80", tb="s81", U2="s82", coff="s83", pm="s84", qm="s85", wmin="s86", wmean="s87")
        C.update(th1="s89", th2="s90", up="s91", dn="s92", dmax="s93")
    else:
        C.update(th1=th1, th2=th2, up=up, dn=dn, dmax=dmax)

    e(HEADER + f"; @launch grid=(256,1,1) block=(256,1,1) lds={lds_bytes}")
    e('.amdgcn_target "amdgcn-amd-amdhsa--gfx950"\n.text')
    e(f".globl {NAME}_kernel\n.p2align 8\n.type {NAME}_kernel,@function\n{NAME}_kernel:")
    if stamps:
        e(f"  s_memrealtime s[{sSt}:{sSt+1}]")
    e("  s_load_dwordx8 s[44:51], s[0:1], 0")
    e(f"  s_load_dwordx2 s[{sDb}:{sDb+1}], s[0:1], 32")
    e("  s_cmp_ge_u32 s2, 256\n  s_cbranch_scc1 L_end")
    if stamps:
        e(f"  s_load_dwordx2 s[64:65], s[0:1], 40\n  s_mov_b32 s68, s2")
    e(f"  v_and_b32 v{vLane}, 63, v0")
    if g1 == 9:
        e(f"  v_bfe_u32 v2, v0, 6, 1\n  v_lshlrev_b32 v{vOff}, 4, v{vLane}\n  v_lshl_add_u32 v{vOff}, v2, {b0}, v{vOff}")
    else:
        e(f"  v_and_b32 v{vOff}, 31, v0\n  v_lshlrev_b32 v{vOff}, 4, v{vOff}\n  v_bfe_u32 v2, v0, 5, 1\n  v_lshl_add_u32 v{vOff}, v2, {g1}, v{vOff}")
        e(f"  v_bfe_u32 v2, v0, 6, 1\n  v_lshl_add_u32 v{vOff}, v2, {b0}, v{vOff}")
    e(f"  v_lshrrev_b32 v2, 7, v0\n  v_lshl_add_u32 v{vOff}, v2, {b1}, v{vOff}")
    e(f"  s_lshl_b32 s5, s2, 20")
    e(f"  s_mov_b32 s{sCur+2}, {region:#x}\n  s_mov_b32 s{sCur+3}, 0x20000")
    if xm:
        e(f"  s_lshr_b32 s{sOff}, s2, {xa}\n  s_and_b32 s{sOff}, s{sOff}, {xm}\n  s_lshl_b32 s76, s{sOff}, {xb}")
        assert (xm << xb) & holes == 0
        e(f"  s_mov_b32 s77, 0\n  s_mov_b32 s{sOff}, s76")
    else:
        e(f"  s_mov_b32 s{sOff}, 0")
    e(f"  s_or_b32 s{sOff2}, s{sOff}, {1<<t2:#x}")
    e(f"  s_lshl_b32 s6, s2, 8\n  v_and_b32 v2, 15, v0\n  v_lshlrev_b32 v2, 4, v2")
    e(f"  s_mov_b32 s{sQ+2}, 256\n  s_mov_b32 s{sQ+3}, 0x20000")
    if cpf:
        e("  s_getpc_b64 s[8:9]\nL_pc:")
        e(f"  v_lshlrev_b32 v{vX}, 7, v{vLane}")
    e("  s_waitcnt lgkmcnt(0)")
    if cfgc:
        e("  s_add_u32 s98, s64, 0x300000\n  s_addc_u32 s99, s65, 0\n  s_load_dwordx16 s[80:95], s[98:99], 0\n  s_waitcnt lgkmcnt(0)")
    e(f"  s_add_u32 s{sCur}, s46, s5\n  s_addc_u32 s{sCur+1}, s47, 0")

    st = {"i": 0}
    def nexttile():
        e("  ; next tile; after 32 tiles switch to V, after 64 make further loads out of range")
        so = 77 if xm else sOff
        e(f"  s_or_b32 s{so}, s{so}, {holes:#x}\n  s_add_u32 s{so}, s{so}, 1\n  s_and_b32 s{so}, s{so}, {(region-1) & ~holes:#x}")
        if xm:
            e(f"  s_xor_b32 s{sOff}, s77, s76")
        e(f"  s_or_b32 s{sOff2}, s{sOff}, {1<<t2:#x}")
        e(f"  s_add_u32 s{sCnt}, s{sCnt}, 1")
        e(f"  s_cmp_eq_u32 s{sCnt}, 32")
        e(f"  s_cselect_b64 s[{sCur}:{sCur+1}], s[{sV}:{sV+1}], s[{sCur}:{sCur+1}]")
        e(f"  s_cmp_ge_u32 s{sCnt}, 64")
        e(f"  s_cselect_b32 s{sCur+2}, 0, s{sCur+2}")
    def loadins():
        slot = st["i"] % R
        so = sOff if slot < 4 else sOff2
        return f"  buffer_load_dwordx4 v[{vR+4*slot}:{vR+4*slot+3}], v{vOff}, s[{sCur}:{sCur+3}], s{so} offen offset:{(slot%4)*1024} nt"
    def after_load():
        st["i"] += 1
        if st["i"] % R == 0:
            nexttile()
            return True
        return False
    e(loadins()); after_load()
    e(f"  s_add_u32 s{sQ}, s44, s6\n  s_addc_u32 s{sQ+1}, s45, 0")
    e(f"  buffer_load_dwordx4 v[{vQ}:{vQ+3}], v2, s[{sQ}:{sQ+3}], 0 offen {qflags}")
    for i_ in range(R - 2):
        e(loadins()); after_load()
        if cpf and i_ == cpfpos:
            l = newlab()
            if cfgc:
                e(f"  s_cmp_eq_u32 s88, 0\n  s_cbranch_scc1 {l}")
            e(f"  v_cmp_gt_u32 vcc, L_end-L_pc, v{vX}\n  s_and_saveexec_b64 s[10:11], vcc")
            if cpf == 2:
                e(f"  v_readfirstlane_b32 s3, v0\n  s_cmp_ge_u32 s3, 64\n  s_cbranch_scc1 {l}_r")
            e(f"  global_load_dword v{vX+1}, v{vX}, s[8:9]")
            e(f"{l}_r:\n  s_mov_b64 exec, s[10:11]")
            e(f"{l}:")
    e(f"  v_lshrrev_b32 v2, 6, v0")
    e(f"  s_add_u32 s{sV}, s48, s5\n  s_addc_u32 s{sV+1}, s49, 0")
    e(f"  v_readfirstlane_b32 s{sWave}, v2")
    e(f"  s_add_u32 s{sO}, s50, s6\n  s_addc_u32 s{sO+1}, s51, 0\n  s_mov_b32 s{sO+2}, 256\n  s_mov_b32 s{sO+3}, 0x20000")
    e(f"  s_mov_b32 s{sCnt}, 0")
    if pfd:
        e(f"  s_mov_b64 s[10:11], s[{sCur}:{sCur+1}]")
        for i in range(1, pfd):
            if xm:
                e(f"  s_xor_b32 s3, s76, {i<<16:#x}\n  s_load_dword s69, s[10:11], s3")
            else:
                e(f"  s_load_dword s69, s[10:11], {i<<16:#x}")
    if warm & 1:
        e(f"  s_load_dword s78, s[{sV}:{sV+1}], 0")
    if warm & 2:
        e(f"  s_load_dword s79, s[{sO}:{sO+1}], 0")
    if warm & 4:
        e(f"  s_load_dword s73, s[{sDb}:{sDb+1}], 0")
    e(f"  s_mov_b32 s{sC}, {f2u(c):#x}\n  s_mov_b32 s{sMask}, 0xffff0000")
    e(f"  s_mov_b32 s{sB1}, 0xcccccccc\n  s_mov_b32 s{sB1+1}, 0xcccccccc")
    e(f"  s_mov_b32 s{sB0}, 0xaaaaaaaa\n  s_mov_b32 s{sB0+1}, 0xaaaaaaaa")
    e(f"  s_mul_i32 s3, s{sWave}, {ngroups*256}")
    e(f"  v_lshl_add_u32 v{vLds}, v{vLane}, 2, s3")
    e(f"  v_mov_b32 v{vM}, 0xff7fffff\n  v_mov_b32 v{vL}, 0")
    for i in range(8):
        e(f"  v_mov_b32 v{vAcc+i}, 0")
    e(f"  s_mov_b32 s{sDb+2}, 32\n  s_mov_b32 s{sDb+3}, 0x20000")
    e(f"  s_mov_b32 s{sLvl}, {init}\n  s_mov_b32 s{sVT}, 0\n  s_mov_b32 s{sK}, 0\n  s_mov_b32 s{sHave}, 0\n  s_mov_b32 s{sPhi}, 0")
    if evt:
        e("  s_mov_b32 s78, 0")
    if adapt:
        e(f"  s_mov_b32 s79, 0\n  s_and_b32 s69, s{sWave}, {pollspread-1}\n  s_add_u32 s69, s69, {polld}")
    e(f"  v_and_b32 v{vPollA}, 7, v{vLane}\n  v_lshlrev_b32 v{vPollA}, 2, v{vPollA}")
    e(f"  s_lshl_b32 s3, s2, 2\n  v_lshl_add_u32 v{vPubA}, v{vLane}, 5, s3")
    e(f"  s_lshr_b32 s3, s2, 3\n  s_or_b32 s3, s3, s{sWave}\n  s_cmp_eq_u32 s3, 0\n  s_cselect_b32 s{sPubM}, {C['pm']}, 0")
    e(f"  s_and_b32 s3, s{sWave}, {pollspread-1}\n  s_lshl_b32 s{sPollM}, {C['qm']}, s3")
    if stamps:
        e(f"  s_waitcnt vmcnt({R-2})\n  s_memrealtime s[{sSt+2}:{sSt+3}]")

    def setflags():
        if brmode == 1:
            e(f"  s_cmp_eq_u32 s{sLvl}, 0\n  s_cselect_b64 vcc, -1, 0\n  s_cmp_eq_u32 s{sLvl}, 2")
    def waits_and_load():
        a, b = newlab(), newlab()
        if brmode == 1:
            e(f"  s_cbranch_vccnz {a}\n  s_cbranch_scc0 {b}")
        else:
            e(f"  s_cmp_eq_u32 s{sLvl}, 0\n  s_cbranch_scc1 {a}\n  s_cmp_eq_u32 s{sLvl}, 1\n  s_cbranch_scc1 {b}")
        i = st["i"]
        wm = int(str(midp)[i % len(str(midp))]) if midp else Wmid
        wl = int(str(lop)[i % len(str(lop))]) if lop else Wlo
        wh = int(str(hip)[i % len(str(hip))]) if hip else Whi
        e(f"  s_waitcnt vmcnt({wl-1})\n{b}:\n  s_waitcnt vmcnt({wm-1})\n{a}:\n  s_waitcnt vmcnt({wh-1})")
        e(loadins())
        return after_load()
    def ctl_pre(kk):
        if kk % 8 == 2:
            e(f"  s_memrealtime s[{sT}:{sT+1}]")
    def ctl_post(kk):
        dirty = False
        if kk % 8 == 7:
            e("  ; own lead = nominal progress - clock; compare with the reference -> depth level")
            inc = C['U2'] if not UG else (UG // 2 if kk == 7 else UG - UG // 2)
            e(f"  s_add_u32 s{sVT}, s{sVT}, {inc}")
            e("  s_waitcnt lgkmcnt(0)")
            e(f"  s_sub_u32 s{sPhi}, s{sVT}, s{sT}")
            if corr:
                e(f"  s_cmp_eq_u32 s{sLvl}, 1\n  s_cselect_b32 s3, {corr*(Whi-Wmid)}, 0\n  s_cmp_eq_u32 s{sLvl}, 2\n  s_cselect_b32 s3, {corr*(Whi-Wlo)}, s3\n  s_add_u32 s{sPhi}, s{sPhi}, s3")
            if adapt and kk == 15:
                e(f"  s_add_u32 s{sK}, s{sK}, s79")
            e(f"  s_sub_u32 s3, s{sPhi}, s{sK}")
            e(f"  s_cmp_gt_i32 s3, {C['ta']}\n  s_cselect_b32 s{sLvl}, 1, 0")
            e(f"  s_cmp_gt_i32 s3, {C['tb']}\n  s_cselect_b32 s{sLvl}, 2, s{sLvl}")
            e(f"  s_cmp_eq_u32 s{sHave}, 0\n  s_cselect_b32 s{sLvl}, 1, s{sLvl}")
            if endhi:
                e(f"  s_cmp_ge_u32 s{sCnt}, {endhi}\n  s_cselect_b32 s{sLvl}, 0, s{sLvl}")
            if pfd and kk == 7:
                l = newlab()
                e(f"  s_lshr_b32 s3, s{sCnt}, 1\n  s_add_u32 s3, s3, {pfd}")
                if not pfall:
                    e(f"  s_xor_b32 s4, s3, s{sWave}\n  s_and_b32 s4, s4, 3\n  s_cbranch_scc1 {l}")
                e(f"  s_cmp_ge_u32 s3, 32\n  s_cbranch_scc1 {l}")
                e(f"  s_cmp_ge_u32 s3, 16\n  s_cselect_b64 s[8:9], s[{sV}:{sV+1}], s[10:11]")
                e(f"  s_and_b32 s3, s3, 15\n  s_lshl_b32 s3, s3, 16")
                if xm:
                    e(f"  s_xor_b32 s3, s3, s76")
                e(f"  s_load_dword s69, s[8:9], s3")
                e(f"{l}:")
            if trace and kk == 15:
                e(f"  s_lshr_b32 m0, s{sCnt}, 1\n  s_nop 0\n  v_writelane_b32 v{vTr}, s{sT}, m0")
            dirty = True
        if kk == pubstep:
            l = newlab()
            e(f"  s_lshr_b32 s3, s{sCnt}, 1\n  s_bitcmp1_b32 s{sPubM}, s3\n  s_cbranch_scc0 {l}")
            if evt:
                e(f"  s_sub_u32 s3, s{sPhi}, s78\n  s_add_u32 s3, s3, {evt}\n  s_cmp_le_u32 s3, {2*evt}\n  s_cbranch_scc1 {l}")
                e(f"  s_mov_b32 s78, s{sPhi}")
            e(f"  v_mov_b32 v{vX}, s{sPhi}")
            e(f"  buffer_store_dword v{vX}, v{vPubA}, s[{sDb}:{sDb+3}], 0 offen sc1")
            e(f"{l}:")
            dirty = True
        if kk == usestep:
            l = newlab()
            g = f"s_lshr_b32 s3, s{sCnt}, 1" + ("\n  s_sub_u32 s3, s3, 1" if usestep >= 8 else "")
            e(f"  {g}\n  s_bitcmp1_b32 s{sPollM}, s3\n  s_cbranch_scc0 {l}")
            e(f"  v_subrev_u32 v{vX}, s{sPhi}, v{vPoll}")
            e(f"  v_add_u32 v{vPoll}, {win}, v{vX}")
            e(f"  v_cmp_gt_u32 vcc, {2*win}, v{vPoll}")
            e(f"  s_nop 1")
            e(f"  v_cndmask_b32 v{vX}, 0, v{vX}, vcc")
            e(f"  v_mov_b32 v{vX+1}, v{vX}")
            e("  s_nop 1")
            for p in ["quad_perm:[1,0,3,2]", "quad_perm:[2,3,0,1]", "row_half_mirror"]:
                e(f"  v_add_u32_dpp v{vX}, v{vX}, v{vX} {p} {DPPF}")
                e(f"  v_min_i32_dpp v{vX+1}, v{vX+1}, v{vX+1} {p} {DPPF}\n  s_nop 0")
            e(f"  v_readfirstlane_b32 s3, v{vX}")
            e(f"  v_readfirstlane_b32 s4, v{vX+1}")
            if not adapt:
                e(f"  s_mov_b32 s{sHave}, 1")
            e(f"  s_mul_i32 s3, s3, {C['wmean']}\n  s_lshl_b32 s4, s4, 3\n  s_mul_i32 s4, s4, {C['wmin']}")
            e(f"  s_add_i32 s3, s3, s4\n  s_ashr_i32 s3, s3, 6")
            if adapt:
                e("  ; s79 = drift of the reference per group: up while everybody keeps up, down when they fall behind")
                e(f"  s_add_u32 s3, s{sPhi}, s3")
                e(f"  s_mul_i32 s4, s79, s69\n  s_add_u32 s3, s3, s4")
                e(f"  s_sub_u32 s4, s3, s{sK}\n  s_mov_b32 s{sK}, s3")
                e(f"  s_cmp_gt_i32 s4, {C['th1']}\n  s_cselect_b32 s3, {C['up']}, 0\n  s_add_i32 s3, s3, s79")
                e(f"  s_cmp_lt_i32 s4, {C['th2']}\n  s_cselect_b32 s4, {C['dn']}, 0\n  s_sub_i32 s3, s3, s4")
                e(f"  s_min_i32 s3, s3, {C['dmax']}")
                e(f"  s_cmp_eq_u32 s{sHave}, 0\n  s_cselect_b32 s79, 0, s3\n  s_mov_b32 s{sHave}, 1")
            else:
                e(f"  s_add_u32 s{sK}, s{sPhi}, s3")
            if cfgc or coff:
                e(f"  s_add_u32 s{sK}, s{sK}, {C['coff']}")
            e(f"{l}:")
            dirty = True
        if kk == pollstep:
            l = newlab()
            e(f"  s_lshr_b32 s3, s{sCnt}, 1\n  s_bitcmp1_b32 s{sPollM}, s3\n  s_cbranch_scc0 {l}")
            e(f"  buffer_load_dword v{vPoll}, v{vPollA}, s[{sDb}:{sDb+3}], 0 offen sc1")
            e(f"{l}:")
            dirty = True
        return dirty

    def lvl1(j):
        e(f"  v_add_f32_dpp v{vB+j}, v{vA}, v{vA} row_ror:8 {DPPF}")
        e(f"  v_add_f32_dpp v{vB+j}, v{vA+1}, v{vA+1} row_ror:8 row_mask:0xf bank_mask:0xc")
    def lvl2(j):
        e(f"  v_add_f32_dpp v{vC+j}, v{vB}, v{vB} row_half_mirror {DPPF}")
        e(f"  v_add_f32_dpp v{vC+j}, v{vB+1}, v{vB+1} row_half_mirror row_mask:0xf bank_mask:0xa")
    def lvl3(j):
        e(f"  v_add_f32_dpp v{vC}, v{vC}, v{vC} quad_perm:[2,3,0,1] {DPPF}")
        e(f"  v_add_f32_dpp v{vC+1}, v{vC+1}, v{vC+1} quad_perm:[2,3,0,1] {DPPF}")
        e(f"  v_cndmask_b32 v{vD+j}, v{vC}, v{vC+1}, s[{sB1}:{sB1+1}]")
    def lvl4():
        e(f"  v_add_f32_dpp v{vD}, v{vD}, v{vD} quad_perm:[1,0,3,2] {DPPF}")
        e(f"  v_add_f32_dpp v{vD+1}, v{vD+1}, v{vD+1} quad_perm:[1,0,3,2] {DPPF}")
        e(f"  v_cndmask_b32 v{vT0}, v{vD}, v{vD+1}, s[{sB0}:{sB0+1}]")
    def combine_after(kk):
        if kk % 2 == 1:
            lvl1((kk >> 1) & 1)
        if kk % 4 == 3:
            e("  s_nop 1"); lvl2((kk >> 2) & 1)
        if kk % 8 == 7:
            e("  s_nop 1"); lvl3((kk >> 3) & 1)
        if kk == 15:
            e("  s_nop 1"); lvl4()
            e(f"  v_mul_f32 v{vT0}, s{sC}, v{vT0}")
            e(f"  ds_write_b32 v{vLds}, v{vT0}")
            e(f"  v_max_f32 v{vM}, v{vM}, v{vT0}")
            e(f"  v_add_u32 v{vLds}, 256, v{vLds}")
    def allreduce(v, op, t):
        for sh in (8, 4, 2, 1):
            e("  s_nop 1")
            e(f"  v_{op}_f32_dpp v{v}, v{v}, v{v} row_ror:{sh} {DPPF}")
        e(f"  v_mov_b32 v{t}, v{v}\n  s_nop 1\n  v_permlane16_swap_b32 v{v}, v{t}\n  s_nop 1\n  v_{op}_f32 v{v}, v{v}, v{t}")
        e(f"  v_mov_b32 v{t}, v{v}\n  s_nop 1\n  v_permlane32_swap_b32 v{v}, v{t}\n  s_nop 1\n  v_{op}_f32 v{v}, v{v}, v{t}")

    for _ in range(pad):
        e("  s_nop 0")
    e(f"  s_mov_b32 s{sIter}, {ngroups}")
    e("L_kloop:")
    setflags()
    for kk in range(16):
        d1 = waits_and_load()
        ctl_pre(kk)
        if kk > 0 and (kk - 1) % 2 == 1:
            e("  s_nop 0")
            combine_after(kk - 1)
        a = vA + (kk & 1)
        for d in range(4):
            src2 = "0" if d == 0 else f"v{a}"
            e(f"  v_dot2_f32_bf16 v{a}, v{vR+4*(kk%R)+d}, v{vQ+d}, {src2}")
        if kk == 15:
            e("  s_nop 2")
            combine_after(15)
        d2 = ctl_post(kk)
        if (d1 or d2) and kk < 15:
            setflags()
    e(f"  s_sub_u32 s{sIter}, s{sIter}, 1\n  s_cmp_lg_u32 s{sIter}, 0\n  s_cbranch_scc1 L_kloop")
    e(f"  v_subrev_u32 v{vLds}, {ngroups*256}, v{vLds}")
    e(f"  ds_read_b32 v{vPn}, v{vLds}")
    allreduce(vM, "max", vT0)
    e("  ; ---- pass 2: V")
    e(f"  s_mov_b32 s{sIter}, {ngroups}")
    e("L_vloop:")
    setflags()
    for kk in range(16):
        d1 = waits_and_load()
        ctl_pre(kk)
        if kk == 0:
            e("  s_waitcnt lgkmcnt(0)")
            e(f"  v_sub_f32 v{vP}, v{vPn}, v{vM}")
            e(f"  v_add_u32 v{vLds}, 256, v{vLds}")
            e(f"  v_exp_f32 v{vP}, v{vP}")
            e(f"  ds_read_b32 v{vPn}, v{vLds}")
            e(f"  s_nop 0")
            e(f"  v_add_f32 v{vL}, v{vL}, v{vP}")
        vr = vR + 4 * (kk % R)
        sel = kk & 1
        e(f"  v_mov_b32_dpp v{vPb+sel}, v{vP} row_newbcast:{bitrev4(kk)} {DPPF}")
        for d in range(4):
            e(f"  v_lshlrev_b32 v{vTmp+2*d}, 16, v{vr+d}")
            e(f"  v_and_b32 v{vTmp+2*d+1}, s{sMask}, v{vr+d}")
        for d in range(4):
            e(f"  v_pk_fma_f32 v[{vAcc+2*d}:{vAcc+2*d+1}], v[{vTmp+2*d}:{vTmp+2*d+1}], v[{vPb}:{vPb+1}], v[{vAcc+2*d}:{vAcc+2*d+1}] op_sel:[0,{sel},0] op_sel_hi:[1,{sel},1]")
        d2 = ctl_post(kk)
        if epi == 2 and kk == 9:
            l = newlab()
            stt = vTmp
            e(f"  s_cmp_lg_u32 s{sIter}, 1\n  s_cbranch_scc1 {l}")
            allreduce(vL, "add", vT0)
            e(f"  s_lshl_b32 s3, s{sWave}, 3\n  v_mov_b32 v2, s3\n  s_mov_b64 exec, 1")
            e(f"  ds_write_b64 v2, v[{vM}:{vM+1}] offset:{S_BYTES+NW*512}")
            e(f"  s_mov_b64 exec, -1\n  v_mov_b32 v2, 0\n  s_waitcnt lgkmcnt(0)\n  s_barrier")
            e(f"  ds_read_b128 v[{stt}:{stt+3}], v2 offset:{S_BYTES+NW*512}")
            e(f"  ds_read_b128 v[{stt+4}:{stt+7}], v2 offset:{S_BYTES+NW*512+16}")
            e("  s_waitcnt lgkmcnt(0)")
            e(f"  v_max_f32 v{vT0}, v{stt}, v{stt+2}\n  v_max3_f32 v{vT0}, v{vT0}, v{stt+4}, v{stt+6}")
            e(f"  v_sub_f32 v{vM}, v{vM}, v{vT0}")
            for w in range(NW):
                e(f"  v_sub_f32 v{stt+2*w}, v{stt+2*w}, v{vT0}")
            e(f"  v_exp_f32 v{vM}, v{vM}")
            for w in range(NW):
                e(f"  v_exp_f32 v{stt+2*w}, v{stt+2*w}")
            e("  s_nop 0")
            e(f"  v_mul_f32 v{vL}, v{stt}, v{stt+1}")
            for w in range(1, NW):
                e(f"  v_fmac_f32 v{vL}, v{stt+2*w}, v{stt+2*w+1}")
            e(f"  v_rcp_f32 v{vL}, v{vL}\n  s_nop 0\n  v_mul_f32 v{vL}, v{vL}, v{vM}")
            e(f"  v_and_b32 v2, 15, v{vLane}\n  v_lshlrev_b32 v2, 5, v2\n  v_lshrrev_b32 v{vT0}, 4, v{vLane}\n  v_lshl_add_u32 v2, v{vT0}, 3, v2")
            e(f"  s_lshl_b32 s3, s{sWave}, 9\n  v_add_u32 v{vLds}, s3, v2\n  v_lshrrev_b32 v{vM}, 1, v2")
            e(f"{l}:")
            d2 = True
        if (d1 or d2) and kk < 15:
            setflags()
    e(f"  s_sub_u32 s{sIter}, s{sIter}, 1\n  s_cmp_lg_u32 s{sIter}, 0\n  s_cbranch_scc1 L_vloop")
    if stamps:
        e(f"  s_memrealtime s[{sSt+4}:{sSt+5}]")
    if epi == 2:
        e("  ; ---- sum the four key rows of the wave, scale by 2^(wave max - row max) / sum, add the waves, store")
        for i in range(4):
            e(f"  v_permlane32_swap_b32 v{vAcc+i}, v{vAcc+i+4}")
        e("  s_nop 0")
        for i in range(4):
            e(f"  v_add_f32 v{vAcc+i}, v{vAcc+i}, v{vAcc+i+4}")
        e("  s_nop 0")
        e(f"  v_permlane16_swap_b32 v{vAcc}, v{vAcc+2}\n  v_permlane16_swap_b32 v{vAcc+1}, v{vAcc+3}")
        e(f"  s_cmp_eq_u32 s{sWave}, 0")
        e(f"  v_add_f32 v{vAcc}, v{vAcc}, v{vAcc+2}\n  v_add_f32 v{vAcc+1}, v{vAcc+1}, v{vAcc+3}")
        e(f"  v_mul_f32 v{vAcc}, v{vAcc}, v{vL}\n  v_mul_f32 v{vAcc+1}, v{vAcc+1}, v{vL}")
        e("  s_cbranch_scc1 L_w0")
        e(f"  ds_write_b64 v{vLds}, v[{vAcc}:{vAcc+1}] offset:{S_BYTES}")
        e("  s_waitcnt lgkmcnt(0)\n  s_barrier\n  s_endpgm")
        e("L_w0:\n  s_barrier")
        for w in range(1, NW):
            e(f"  ds_read_b64 v[{vAcc+2*w}:{vAcc+2*w+1}], v2 offset:{S_BYTES+w*512}")
        e("  s_waitcnt lgkmcnt(1)")
        e(f"  v_pk_add_f32 v[{vAcc}:{vAcc+1}], v[{vAcc}:{vAcc+1}], v[{vAcc+2}:{vAcc+3}]")
        e(f"  v_pk_add_f32 v[{vAcc}:{vAcc+1}], v[{vAcc}:{vAcc+1}], v[{vAcc+4}:{vAcc+5}]")
        e("  s_waitcnt lgkmcnt(0)")
        e(f"  v_pk_add_f32 v[{vAcc}:{vAcc+1}], v[{vAcc}:{vAcc+1}], v[{vAcc+6}:{vAcc+7}]")
        e(f"  v_cvt_pk_bf16_f32 v{vAcc}, v{vAcc}, v{vAcc+1}")
        e(f"  buffer_store_dword v{vAcc}, v{vM}, s[{sO}:{sO+3}], 0 offen {outflags}")
    else:
        t = vTmp
        for i in range(4):
            e(f"  v_permlane32_swap_b32 v{vAcc+i}, v{vAcc+i+4}")
        e(f"  v_and_b32 v2, 15, v{vLane}\n  v_lshlrev_b32 v2, 5, v2\n  v_lshrrev_b32 v{t}, 4, v{vLane}\n  v_lshl_add_u32 v2, v{t}, 3, v2")
        for i in range(4):
            e(f"  v_add_f32 v{vAcc+i}, v{vAcc+i}, v{vAcc+i+4}")
        e(f"  s_lshl_b32 s3, s{sWave}, 9\n  v_add_u32 v2, s3, v2")
        e(f"  v_permlane16_swap_b32 v{vAcc}, v{vAcc+2}\n  v_permlane16_swap_b32 v{vAcc+1}, v{vAcc+3}")
        e("  s_nop 1")
        e(f"  v_add_f32 v{vAcc}, v{vAcc}, v{vAcc+2}\n  v_add_f32 v{vAcc+1}, v{vAcc+1}, v{vAcc+3}")
        e(f"  ds_write_b64 v2, v[{vAcc}:{vAcc+1}] offset:{S_BYTES}")
        allreduce(vL, "add", vT0)
        e(f"  s_lshl_b32 s3, s{sWave}, 3\n  v_mov_b32 v2, s3")
        e(f"  v_cmp_eq_u32 vcc, 0, v{vLane}\n  s_and_saveexec_b64 s[4:5], vcc")
        e(f"  ds_write_b64 v2, v[{vM}:{vM+1}] offset:{S_BYTES+NW*512}")
        e(f"  s_mov_b64 exec, s[4:5]")
        e("  s_waitcnt lgkmcnt(0)\n  s_barrier")
        e(f"  s_cmp_lg_u32 s{sWave}, 0\n  s_cbranch_scc1 L_end")
        stt = vTmp; dt = vAcc + 2
        dts = [18, 20, 22, 4]
        e(f"  v_mov_b32 v2, 0\n  v_lshlrev_b32 v{vT0}, 3, v{vLane}")
        for w in range(0, NW - 1, 2):
            e(f"  ds_read_b128 v[{stt+2*w}:{stt+2*w+3}], v2 offset:{S_BYTES+NW*512+w*8}")
        for w in range(NW):
            e(f"  ds_read_b64 v[{dts[w]}:{dts[w]+1}], v{vT0} offset:{S_BYTES+w*512}")
        e(f"  s_waitcnt lgkmcnt({NW})")
        e(f"  v_max_f32 v{vM}, v{stt}, v{stt+2}\n  v_max3_f32 v{vM}, v{vM}, v{stt+4}, v{stt+6}")
        for w in range(NW):
            e(f"  v_sub_f32 v{stt+2*w}, v{stt+2*w}, v{vM}")
        for w in range(NW):
            e(f"  v_exp_f32 v{stt+2*w}, v{stt+2*w}")
        e(f"  v_lshlrev_b32 v2, 2, v{vLane}")
        e(f"  v_mul_f32 v{vL}, v{stt}, v{stt+1}")
        for w in range(1, NW):
            e(f"  v_fmac_f32 v{vL}, v{stt+2*w}, v{stt+2*w+1}")
        e(f"  v_rcp_f32 v{vL}, v{vL}")
        e("  s_waitcnt lgkmcnt(0)")
        e(f"  v_mul_f32 v{vAcc}, v{stt}, v{dts[0]}\n  v_mul_f32 v{vAcc+1}, v{stt}, v{dts[0]+1}")
        for w in range(1, NW):
            e(f"  v_fmac_f32 v{vAcc}, v{stt+2*w}, v{dts[w]}\n  v_fmac_f32 v{vAcc+1}, v{stt+2*w}, v{dts[w]+1}")
        e(f"  v_mul_f32 v{vAcc}, v{vAcc}, v{vL}\n  v_mul_f32 v{vAcc+1}, v{vAcc+1}, v{vL}")
        e(f"  v_cvt_pk_bf16_f32 v{vAcc}, v{vAcc}, v{vAcc+1}")
        e(f"  buffer_store_dword v{vAcc}, v2, s[{sO}:{sO+3}], 0 offen {outflags}")

    if stamps:
        b = vR + 16
        e(f"  s_waitcnt vmcnt(0)\n  s_memrealtime s[{sSt+6}:{sSt+7}]")
        e("  s_getreg_b32 s66, hwreg(HW_REG_HW_ID)\n  s_getreg_b32 s67, hwreg(HW_REG_XCC_ID)")
        e("  s_lshl_b32 s3, s68, 6\n  s_add_u32 s64, s64, s3\n  s_addc_u32 s65, s65, 0\n  s_waitcnt lgkmcnt(0)")
        for i in range(8):
            e(f"  v_mov_b32 v{b+i}, s{sSt+i}")
        if trace:
            e(f"  s_mul_i32 s3, s68, 192\n  s_add_u32 s3, s3, 0x100000\n  v_lshl_add_u32 v2, v{vLane}, 2, s3\n  global_store_dword v2, v{vTr}, s[64:65]")
        e(f"  v_mov_b32 v{b+8}, s66\n  v_mov_b32 v{b+9}, s67\n  v_mov_b32 v2, 0")
        e(f"  v_cmp_eq_u32 vcc, 0, v{vLane}\n  s_and_saveexec_b64 s[4:5], vcc")
        e(f"  global_store_dwordx4 v2, v[{b}:{b+3}], s[64:65]\n  global_store_dwordx4 v2, v[{b+4}:{b+7}], s[64:65] offset:16\n  global_store_dwordx2 v2, v[{b+8}:{b+9}], s[64:65] offset:56")
    e("L_end:\n  s_endpgm")
    e('.section .rodata,"a"\n.p2align 6')
    e(f".amdhsa_kernel {NAME}_kernel\n  .amdhsa_next_free_vgpr {nv}\n  .amdhsa_next_free_sgpr {100 if cfgc else 80}\n  .amdhsa_accum_offset {(nv+3)//4*4}")
    e("  .amdhsa_group_segment_fixed_size 0\n  .amdhsa_kernarg_size 48\n  .amdhsa_user_sgpr_count 2\n  .amdhsa_user_sgpr_kernarg_segment_ptr 1\n  .amdhsa_system_sgpr_workgroup_id_x 1\n.end_amdhsa_kernel")
    return "\n".join(L) + "\n"

if __name__ == "__main__":
    kw = {}
    for a in sys.argv[2:]:
        k, v = a.split("=", 1)
        if v in ("True", "False"): v = v == "True"
        else:
            try: v = int(v, 0)
            except ValueError: v = v.replace("+", " ")
        kw[k] = v
    open(sys.argv[1], "w").write(gen(**kw))
```

```python
import sys, math, struct
NAME = "standalone__softmax_full_bidir__sampling"
HEADER = """; Decode attention (Sq=1), B=8 H=32 Skv=4096 D=128, bf16 in/out.  One workgroup (4 waves) per (b,h).
"""
def f2u(x):
    return struct.unpack("<I", struct.pack("<f", x))[0]
def bitrev4(x):
    return ((x & 1) << 3) | ((x & 2) << 1) | ((x & 4) >> 1) | ((x & 8) >> 3)

def gen(b0=13, b1=15, Whi=7, Wmid=5, Wlo=4, ta=-30, tb=30, U2=108, pubs="0.6.14.21.27", polld=1, pollspread=4,
        wmin=4, coff=0, win=2000, stamps=False, trace=False, cfgc=False, xa=0, xm=0, xb=0, brmode=1, epi=1,
        init=1, ldsk=False, outflags="", mfma=False, pollstep=1, usestep=12, pubstep=15, endhi=0, warm=0, pfd=0, pfall=False, qflags='', pad=0, midp='', lop='', hip='', UG=0, evt=0, PP=4, corr=0, lastpub=29, evtfix=False, g1=9, cpf=0, cpfpos=3, adapt=False, th1=-15, th2=-30, up=1, dn=2, dmax=3, wmin0=-1, fresh=0):
    L = []; e = L.append
    NW, R = 4, 8
    region = 1 << 20
    ngroups = 16
    t2 = [b for b in range(12, 20) if b not in (b0, b1, g1)][0]
    holes = (1 << b0) | (1 << b1) | (1 << t2) | (1 << g1) | 0xdff
    assert holes & 0x200 and bin(holes & 0xfffff).count("1") == 15
    vOff, vLane = 1, 3
    vQ = 4
    vM, vL = 8, 9
    vP, vPn = 10, 11
    vPb = 12
    vLds, vT0 = 14, 15
    vAcc = 16
    vTmp = 24
    vA, vB, vC, vD = 24, 26, 28, 30
    vR = 32
    vPoll, vPollA, vPubA, vTr, vX = 64, 65, 66, 67, 68
    nv = 70
    sV, sQ, sO, sCur, sDb = 12, 16, 20, 24, 36
    sOff, sOff2, sCnt = 28, 29, 30
    sC, sMask, sIter, sWave = 40, 41, 42, 43
    sB1, sB0 = 32, 34
    sLvl, sVT, sK, sHave, sPhi, sPubM, sPollM, sT = 52, 53, 54, 55, 70, 71, 72, 74
    sSt = 56
    c = (128 ** -0.5) * math.log2(math.e)
    S_BYTES = 4096 * 4
    lds_bytes = S_BYTES + NW * 512 + NW * 8
    DPPF = "row_mask:0xf bank_mask:0xf"
    lab = {"n": 0}
    def newlab():
        lab["n"] += 1
        return f"L_{lab['n']}"
    pl = [int(g) for g in str(pubs).split(".")]
    pm = sum(1 << (g + 1) for g in pl) & 0xffffffff
    qm = sum(1 << (g + 1 + polld) for g in pl) & 0xffffffff
    if evt and not evtfix:
        pm = sum(1 << (g + 1) for g in range(0, lastpub + 1)) & 0xffffffff
        qm = sum(1 << g for g in range(2, 32, PP)) & 0xffffffff
        pollspread = PP
    C = dict(ta=ta, tb=tb, U2=U2, coff=coff, pm=f"{pm:#x}", qm=f"{qm:#x}", wmin=wmin, wmean=8 - wmin)
    if cfgc:
        C = dict(ta="s80", tb="s81", U2="s82", coff="s83", pm="s84", qm="s85", wmin="s86", wmean="s87")
        C.update(th1="s89", th2="s90", up="s91", dn="s92", dmax="s93")
    else:
        C.update(th1=th1, th2=th2, up=up, dn=dn, dmax=dmax)

    e(HEADER + f"; @launch grid=(256,1,1) block=(256,1,1) lds={lds_bytes}")
    e('.amdgcn_target "amdgcn-amd-amdhsa--gfx950"\n.text')
    e(f".globl {NAME}_kernel\n.p2align 8\n.type {NAME}_kernel,@function\n{NAME}_kernel:")
    if stamps:
        e(f"  s_memrealtime s[{sSt}:{sSt+1}]")
    e("  s_load_dwordx8 s[44:51], s[0:1], 0")
    e(f"  s_load_dwordx2 s[{sDb}:{sDb+1}], s[0:1], {40 if fresh == 1 else 32}")
    e("  s_cmp_ge_u32 s2, 256\n  s_cbranch_scc1 L_end")
    if stamps:
        e(f"  s_load_dwordx2 s[64:65], s[0:1], 40\n  s_mov_b32 s68, s2")
    e(f"  v_and_b32 v{vLane}, 63, v0")
    if g1 == 9:
        e(f"  v_bfe_u32 v2, v0, 6, 1\n  v_lshlrev_b32 v{vOff}, 4, v{vLane}\n  v_lshl_add_u32 v{vOff}, v2, {b0}, v{vOff}")
    else:
        e(f"  v_and_b32 v{vOff}, 31, v0\n  v_lshlrev_b32 v{vOff}, 4, v{vOff}\n  v_bfe_u32 v2, v0, 5, 1\n  v_lshl_add_u32 v{vOff}, v2, {g1}, v{vOff}")
        e(f"  v_bfe_u32 v2, v0, 6, 1\n  v_lshl_add_u32 v{vOff}, v2, {b0}, v{vOff}")
    e(f"  v_lshrrev_b32 v2, 7, v0\n  v_lshl_add_u32 v{vOff}, v2, {b1}, v{vOff}")
    e(f"  s_lshl_b32 s5, s2, 20")
    e(f"  s_mov_b32 s{sCur+2}, {region:#x}\n  s_mov_b32 s{sCur+3}, 0x20000")
    if xm:
        e(f"  s_lshr_b32 s{sOff}, s2, {xa}\n  s_and_b32 s{sOff}, s{sOff}, {xm}\n  s_lshl_b32 s76, s{sOff}, {xb}")
        assert (xm << xb) & holes == 0
        e(f"  s_mov_b32 s77, 0\n  s_mov_b32 s{sOff}, s76")
    else:
        e(f"  s_mov_b32 s{sOff}, 0")
    e(f"  s_or_b32 s{sOff2}, s{sOff}, {1<<t2:#x}")
    e(f"  s_lshl_b32 s6, s2, 8\n  v_and_b32 v2, 15, v0\n  v_lshlrev_b32 v2, 4, v2")
    e(f"  s_mov_b32 s{sQ+2}, 256\n  s_mov_b32 s{sQ+3}, 0x20000")
    if cpf:
        e("  s_getpc_b64 s[8:9]\nL_pc:")
        e(f"  v_lshlrev_b32 v{vX}, 7, v{vLane}")
    e("  s_waitcnt lgkmcnt(0)")
    if cfgc:
        e("  s_add_u32 s98, s64, 0x300000\n  s_addc_u32 s99, s65, 0\n  s_load_dwordx16 s[80:95], s[98:99], 0\n  s_waitcnt lgkmcnt(0)")
    e(f"  s_add_u32 s{sCur}, s46, s5\n  s_addc_u32 s{sCur+1}, s47, 0")

    st = {"i": 0}
    def nexttile():
        e("  ; next tile; after 32 tiles switch to V, after 64 make further loads out of range")
        so = 77 if xm else sOff
        e(f"  s_or_b32 s{so}, s{so}, {holes:#x}\n  s_add_u32 s{so}, s{so}, 1\n  s_and_b32 s{so}, s{so}, {(region-1) & ~holes:#x}")
        if xm:
            e(f"  s_xor_b32 s{sOff}, s77, s76")
        e(f"  s_or_b32 s{sOff2}, s{sOff}, {1<<t2:#x}")
        e(f"  s_add_u32 s{sCnt}, s{sCnt}, 1")
        e(f"  s_cmp_eq_u32 s{sCnt}, 32")
        e(f"  s_cselect_b64 s[{sCur}:{sCur+1}], s[{sV}:{sV+1}], s[{sCur}:{sCur+1}]")
        e(f"  s_cmp_ge_u32 s{sCnt}, 64")
        e(f"  s_cselect_b32 s{sCur+2}, 0, s{sCur+2}")
    def loadins():
        slot = st["i"] % R
        so = sOff if slot < 4 else sOff2
        return f"  buffer_load_dwordx4 v[{vR+4*slot}:{vR+4*slot+3}], v{vOff}, s[{sCur}:{sCur+3}], s{so} offen offset:{(slot%4)*1024} nt"
    def after_load():
        st["i"] += 1
        if st["i"] % R == 0:
            nexttile()
            return True
        return False
    e(loadins()); after_load()
    e(f"  s_add_u32 s{sQ}, s44, s6\n  s_addc_u32 s{sQ+1}, s45, 0")
    e(f"  buffer_load_dwordx4 v[{vQ}:{vQ+3}], v2, s[{sQ}:{sQ+3}], 0 offen {qflags}")
    for i_ in range(R - 2):
        e(loadins()); after_load()
        if cpf and i_ == cpfpos:
            l = newlab()
            if cfgc:
                e(f"  s_cmp_eq_u32 s88, 0\n  s_cbranch_scc1 {l}")
            e(f"  v_cmp_gt_u32 vcc, L_end-L_pc, v{vX}\n  s_and_saveexec_b64 s[10:11], vcc")
            if cpf == 2:
                e(f"  v_readfirstlane_b32 s3, v0\n  s_cmp_ge_u32 s3, 64\n  s_cbranch_scc1 {l}_r")
            e(f"  global_load_dword v{vX+1}, v{vX}, s[8:9]")
            e(f"{l}_r:\n  s_mov_b64 exec, s[10:11]")
            e(f"{l}:")
    e(f"  v_lshrrev_b32 v2, 6, v0")
    e(f"  s_add_u32 s{sV}, s48, s5\n  s_addc_u32 s{sV+1}, s49, 0")
    e(f"  v_readfirstlane_b32 s{sWave}, v2")
    e(f"  s_add_u32 s{sO}, s50, s6\n  s_addc_u32 s{sO+1}, s51, 0\n  s_mov_b32 s{sO+2}, 256\n  s_mov_b32 s{sO+3}, 0x20000")
    e(f"  s_mov_b32 s{sCnt}, 0")
    if pfd:
        e(f"  s_mov_b64 s[10:11], s[{sCur}:{sCur+1}]")
        for i in range(1, pfd):
            if xm:
                e(f"  s_xor_b32 s3, s76, {i<<16:#x}\n  s_load_dword s69, s[10:11], s3")
            else:
                e(f"  s_load_dword s69, s[10:11], {i<<16:#x}")
    if warm & 1:
        e(f"  s_load_dword s78, s[{sV}:{sV+1}], 0")
    if warm & 2:
        e(f"  s_load_dword s79, s[{sO}:{sO+1}], 0")
    if warm & 4:
        e(f"  s_load_dword s73, s[{sDb}:{sDb+1}], 0")
    e(f"  s_mov_b32 s{sC}, {f2u(c):#x}\n  s_mov_b32 s{sMask}, 0xffff0000")
    e(f"  s_mov_b32 s{sB1}, 0xcccccccc\n  s_mov_b32 s{sB1+1}, 0xcccccccc")
    e(f"  s_mov_b32 s{sB0}, 0xaaaaaaaa\n  s_mov_b32 s{sB0+1}, 0xaaaaaaaa")
    e(f"  s_mul_i32 s3, s{sWave}, {ngroups*256}")
    e(f"  v_lshl_add_u32 v{vLds}, v{vLane}, 2, s3")
    e(f"  v_mov_b32 v{vM}, 0xff7fffff\n  v_mov_b32 v{vL}, 0")
    for i in range(8):
        e(f"  v_mov_b32 v{vAcc+i}, 0")
    if fresh == 1:
        e(f"  s_add_u32 s{sDb}, s{sDb}, 0x200000\n  s_addc_u32 s{sDb+1}, s{sDb+1}, 0")
    e(f"  s_mov_b32 s{sDb+2}, {32 if not fresh else (16384 if fresh == 1 else 256)}\n  s_mov_b32 s{sDb+3}, 0x20000")
    e(f"  s_mov_b32 s{sLvl}, {init}\n  s_mov_b32 s{sVT}, 0\n  s_mov_b32 s{sK}, 0\n  s_mov_b32 s{sHave}, 0\n  s_mov_b32 s{sPhi}, 0")
    if evt:
        e("  s_mov_b32 s78, 0")
    if adapt:
        e(f"  s_mov_b32 s79, 0\n  s_and_b32 s69, s{sWave}, {pollspread-1}\n  s_add_u32 s69, s69, {polld}")
    e(f"  v_and_b32 v{vPollA}, 7, v{vLane}\n  v_lshlrev_b32 v{vPollA}, 2, v{vPollA}")
    e(f"  s_lshl_b32 s3, s2, 2\n  v_lshl_add_u32 v{vPubA}, v{vLane}, {5 if not fresh else 14}, s3")
    if fresh:
        e("  s_mov_b32 s7, 0")
    e(f"  s_lshr_b32 s3, s2, 3\n  s_or_b32 s3, s3, s{sWave}\n  s_cmp_eq_u32 s3, 0\n  s_cselect_b32 s{sPubM}, {C['pm']}, 0")
    e(f"  s_and_b32 s3, s{sWave}, {pollspread-1}\n  s_lshl_b32 s{sPollM}, {C['qm']}, s3")
    if stamps:
        e(f"  s_waitcnt vmcnt({R-2})\n  s_memrealtime s[{sSt+2}:{sSt+3}]")

    def setflags():
        if brmode == 1:
            e(f"  s_cmp_eq_u32 s{sLvl}, 0\n  s_cselect_b64 vcc, -1, 0\n  s_cmp_eq_u32 s{sLvl}, 2")
    def waits_and_load():
        a, b = newlab(), newlab()
        if brmode == 1:
            e(f"  s_cbranch_vccnz {a}\n  s_cbranch_scc0 {b}")
        else:
            e(f"  s_cmp_eq_u32 s{sLvl}, 0\n  s_cbranch_scc1 {a}\n  s_cmp_eq_u32 s{sLvl}, 1\n  s_cbranch_scc1 {b}")
        i = st["i"]
        wm = int(str(midp)[i % len(str(midp))]) if midp else Wmid
        wl = int(str(lop)[i % len(str(lop))]) if lop else Wlo
        wh = int(str(hip)[i % len(str(hip))]) if hip else Whi
        e(f"  s_waitcnt vmcnt({wl-1})\n{b}:\n  s_waitcnt vmcnt({wm-1})\n{a}:\n  s_waitcnt vmcnt({wh-1})")
        e(loadins())
        return after_load()
    def ctl_pre(kk):
        if kk % 8 == 2:
            e(f"  s_memrealtime s[{sT}:{sT+1}]")
    def ctl_post(kk):
        dirty = False
        if kk % 8 == 7:
            e("  ; own lead = nominal progress - clock; compare with the reference -> depth level")
            inc = C['U2'] if not UG else (UG // 2 if kk == 7 else UG - UG // 2)
            e(f"  s_add_u32 s{sVT}, s{sVT}, {inc}")
            e("  s_waitcnt lgkmcnt(0)")
            e(f"  s_sub_u32 s{sPhi}, s{sVT}, s{sT}")
            if corr:
                e(f"  s_cmp_eq_u32 s{sLvl}, 1\n  s_cselect_b32 s3, {corr*(Whi-Wmid)}, 0\n  s_cmp_eq_u32 s{sLvl}, 2\n  s_cselect_b32 s3, {corr*(Whi-Wlo)}, s3\n  s_add_u32 s{sPhi}, s{sPhi}, s3")
            if adapt and kk == 15:
                e(f"  s_add_u32 s{sK}, s{sK}, s79")
            e(f"  s_sub_u32 s3, s{sPhi}, s{sK}")
            e(f"  s_cmp_gt_i32 s3, {C['ta']}\n  s_cselect_b32 s{sLvl}, 1, 0")
            e(f"  s_cmp_gt_i32 s3, {C['tb']}\n  s_cselect_b32 s{sLvl}, 2, s{sLvl}")
            e(f"  s_cmp_eq_u32 s{sHave}, 0\n  s_cselect_b32 s{sLvl}, 1, s{sLvl}")
            if endhi:
                e(f"  s_cmp_ge_u32 s{sCnt}, {endhi}\n  s_cselect_b32 s{sLvl}, 0, s{sLvl}")
            if pfd and kk == 7:
                l = newlab()
                e(f"  s_lshr_b32 s3, s{sCnt}, 1\n  s_add_u32 s3, s3, {pfd}")
                if not pfall:
                    e(f"  s_xor_b32 s4, s3, s{sWave}\n  s_and_b32 s4, s4, 3\n  s_cbranch_scc1 {l}")
                e(f"  s_cmp_ge_u32 s3, 32\n  s_cbranch_scc1 {l}")
                e(f"  s_cmp_ge_u32 s3, 16\n  s_cselect_b64 s[8:9], s[{sV}:{sV+1}], s[10:11]")
                e(f"  s_and_b32 s3, s3, 15\n  s_lshl_b32 s3, s3, 16")
                if xm:
                    e(f"  s_xor_b32 s3, s3, s76")
                e(f"  s_load_dword s69, s[8:9], s3")
                e(f"{l}:")
            if trace and kk == 15:
                e(f"  s_lshr_b32 m0, s{sCnt}, 1\n  s_nop 0\n  v_writelane_b32 v{vTr}, s{sT}, m0")
            dirty = True
        if kk == pubstep:
            l = newlab()
            e(f"  s_lshr_b32 s3, s{sCnt}, 1\n  s_bitcmp1_b32 s{sPubM}, s3\n  s_cbranch_scc0 {l}")
            if evt:
                e(f"  s_sub_u32 s3, s{sPhi}, s78\n  s_add_u32 s3, s3, {evt}\n  s_cmp_le_u32 s3, {2*evt}\n  s_cbranch_scc1 {l}")
                e(f"  s_mov_b32 s78, s{sPhi}")
            e(f"  v_mov_b32 v{vX}, s{sPhi}")
            if fresh:
                e(f"  buffer_store_dword v{vX}, v{vPubA}, s[{sDb}:{sDb+3}], s7 offen sc1")
            else:
                e(f"  buffer_store_dword v{vX}, v{vPubA}, s[{sDb}:{sDb+3}], 0 offen sc1")
            e(f"{l}:")
            dirty = True
        if kk == usestep:
            l = newlab()
            g = f"s_lshr_b32 s3, s{sCnt}, 1" + ("\n  s_sub_u32 s3, s3, 1" if usestep >= 8 else "")
            e(f"  {g}\n  s_bitcmp1_b32 s{sPollM}, s3\n  s_cbranch_scc0 {l}")
            e(f"  v_subrev_u32 v{vX}, s{sPhi}, v{vPoll}")
            e(f"  v_add_u32 v{vPoll}, {win}, v{vX}")
            e(f"  v_cmp_gt_u32 vcc, {2*win}, v{vPoll}")
            e(f"  s_nop 1")
            e(f"  v_cndmask_b32 v{vX}, 0, v{vX}, vcc")
            e(f"  v_mov_b32 v{vX+1}, v{vX}")
            e("  s_nop 1")
            for p in ["quad_perm:[1,0,3,2]", "quad_perm:[2,3,0,1]", "row_half_mirror"]:
                e(f"  v_add_u32_dpp v{vX}, v{vX}, v{vX} {p} {DPPF}")
                e(f"  v_min_i32_dpp v{vX+1}, v{vX+1}, v{vX+1} {p} {DPPF}\n  s_nop 0")
            e(f"  v_readfirstlane_b32 s3, v{vX}")
            e(f"  v_readfirstlane_b32 s4, v{vX+1}")
            if not adapt:
                e(f"  s_mov_b32 s{sHave}, 1")
            if cfgc or wmin0 >= 0:
                assert adapt
                w0 = "s94" if cfgc else wmin0
                e(f"  s_cmp_eq_u32 s{sHave}, 0\n  s_cselect_b32 s5, {w0}, {C['wmin']}\n  s_sub_u32 s6, 8, s5")
                e(f"  s_mul_i32 s3, s3, s6\n  s_lshl_b32 s4, s4, 3\n  s_mul_i32 s4, s4, s5")
            else:
                e(f"  s_mul_i32 s3, s3, {C['wmean']}\n  s_lshl_b32 s4, s4, 3\n  s_mul_i32 s4, s4, {C['wmin']}")
            e(f"  s_add_i32 s3, s3, s4\n  s_ashr_i32 s3, s3, 6")
            if adapt:
                e("  ; s79 = drift of the reference per group: up while everybody keeps up, down when they fall behind")
                e(f"  s_add_u32 s3, s{sPhi}, s3")
                e(f"  s_mul_i32 s4, s79, s69\n  s_add_u32 s3, s3, s4")
                e(f"  s_sub_u32 s4, s3, s{sK}\n  s_mov_b32 s{sK}, s3")
                e(f"  s_cmp_gt_i32 s4, {C['th1']}\n  s_cselect_b32 s3, {C['up']}, 0\n  s_add_i32 s3, s3, s79")
                e(f"  s_cmp_lt_i32 s4, {C['th2']}\n  s_cselect_b32 s4, {C['dn']}, 0\n  s_sub_i32 s3, s3, s4")
                e(f"  s_min_i32 s3, s3, {C['dmax']}")
                e(f"  s_cmp_eq_u32 s{sHave}, 0\n  s_cselect_b32 s79, 0, s3\n  s_mov_b32 s{sHave}, 1")
            else:
                e(f"  s_add_u32 s{sK}, s{sPhi}, s3")
            if cfgc or coff:
                e(f"  s_add_u32 s{sK}, s{sK}, {C['coff']}")
            e(f"{l}:")
            dirty = True
        if kk == pollstep:
            l = newlab()
            e(f"  s_lshr_b32 s3, s{sCnt}, 1\n  s_bitcmp1_b32 s{sPollM}, s3\n  s_cbranch_scc0 {l}")
            if fresh:
                step = 256 if fresh == 1 else (128 if fresh == 2 else 32)
                e(f"  buffer_load_dword v{vPoll}, v{vPollA}, s[{sDb}:{sDb+3}], s7 offen sc1")
                e(f"  s_add_u32 s7, s7, {step}")
                if fresh == 2:
                    e("  s_and_b32 s7, s7, 255")
            else:
                e(f"  buffer_load_dword v{vPoll}, v{vPollA}, s[{sDb}:{sDb+3}], 0 offen sc1")
            e(f"{l}:")
            dirty = True
        return dirty

    def lvl1(j):
        e(f"  v_add_f32_dpp v{vB+j}, v{vA}, v{vA} row_ror:8 {DPPF}")
        e(f"  v_add_f32_dpp v{vB+j}, v{vA+1}, v{vA+1} row_ror:8 row_mask:0xf bank_mask:0xc")
    def lvl2(j):
        e(f"  v_add_f32_dpp v{vC+j}, v{vB}, v{vB} row_half_mirror {DPPF}")
        e(f"  v_add_f32_dpp v{vC+j}, v{vB+1}, v{vB+1} row_half_mirror row_mask:0xf bank_mask:0xa")
    def lvl3(j):
        e(f"  v_add_f32_dpp v{vC}, v{vC}, v{vC} quad_perm:[2,3,0,1] {DPPF}")
        e(f"  v_add_f32_dpp v{vC+1}, v{vC+1}, v{vC+1} quad_perm:[2,3,0,1] {DPPF}")
        e(f"  v_cndmask_b32 v{vD+j}, v{vC}, v{vC+1}, s[{sB1}:{sB1+1}]")
    def lvl4():
        e(f"  v_add_f32_dpp v{vD}, v{vD}, v{vD} quad_perm:[1,0,3,2] {DPPF}")
        e(f"  v_add_f32_dpp v{vD+1}, v{vD+1}, v{vD+1} quad_perm:[1,0,3,2] {DPPF}")
        e(f"  v_cndmask_b32 v{vT0}, v{vD}, v{vD+1}, s[{sB0}:{sB0+1}]")
    def combine_after(kk):
        if kk % 2 == 1:
            lvl1((kk >> 1) & 1)
        if kk % 4 == 3:
            e("  s_nop 1"); lvl2((kk >> 2) & 1)
        if kk % 8 == 7:
            e("  s_nop 1"); lvl3((kk >> 3) & 1)
        if kk == 15:
            e("  s_nop 1"); lvl4()
            e(f"  v_mul_f32 v{vT0}, s{sC}, v{vT0}")
            e(f"  ds_write_b32 v{vLds}, v{vT0}")
            e(f"  v_max_f32 v{vM}, v{vM}, v{vT0}")
            e(f"  v_add_u32 v{vLds}, 256, v{vLds}")
    def allreduce(v, op, t):
        for sh in (8, 4, 2, 1):
            e("  s_nop 1")
            e(f"  v_{op}_f32_dpp v{v}, v{v}, v{v} row_ror:{sh} {DPPF}")
        e(f"  v_mov_b32 v{t}, v{v}\n  s_nop 1\n  v_permlane16_swap_b32 v{v}, v{t}\n  s_nop 1\n  v_{op}_f32 v{v}, v{v}, v{t}")
        e(f"  v_mov_b32 v{t}, v{v}\n  s_nop 1\n  v_permlane32_swap_b32 v{v}, v{t}\n  s_nop 1\n  v_{op}_f32 v{v}, v{v}, v{t}")

    for _ in range(pad):
        e("  s_nop 0")
    e(f"  s_mov_b32 s{sIter}, {ngroups}")
    e("L_kloop:")
    setflags()
    for kk in range(16):
        d1 = waits_and_load()
        ctl_pre(kk)
        if kk > 0 and (kk - 1) % 2 == 1:
            e("  s_nop 0")
            combine_after(kk - 1)
        a = vA + (kk & 1)
        for d in range(4):
            src2 = "0" if d == 0 else f"v{a}"
            e(f"  v_dot2_f32_bf16 v{a}, v{vR+4*(kk%R)+d}, v{vQ+d}, {src2}")
        if kk == 15:
            e("  s_nop 2")
            combine_after(15)
        d2 = ctl_post(kk)
        if (d1 or d2) and kk < 15:
            setflags()
    e(f"  s_sub_u32 s{sIter}, s{sIter}, 1\n  s_cmp_lg_u32 s{sIter}, 0\n  s_cbranch_scc1 L_kloop")
    e(f"  v_subrev_u32 v{vLds}, {ngroups*256}, v{vLds}")
    e(f"  ds_read_b32 v{vPn}, v{vLds}")
    allreduce(vM, "max", vT0)
    e("  ; ---- pass 2: V")
    e(f"  s_mov_b32 s{sIter}, {ngroups}")
    e("L_vloop:")
    setflags()
    for kk in range(16):
        d1 = waits_and_load()
        ctl_pre(kk)
        if kk == 0:
            e("  s_waitcnt lgkmcnt(0)")
            e(f"  v_sub_f32 v{vP}, v{vPn}, v{vM}")
            e(f"  v_add_u32 v{vLds}, 256, v{vLds}")
            e(f"  v_exp_f32 v{vP}, v{vP}")
            e(f"  ds_read_b32 v{vPn}, v{vLds}")
            e(f"  s_nop 0")
            e(f"  v_add_f32 v{vL}, v{vL}, v{vP}")
        vr = vR + 4 * (kk % R)
        sel = kk & 1
        e(f"  v_mov_b32_dpp v{vPb+sel}, v{vP} row_newbcast:{bitrev4(kk)} {DPPF}")
        for d in range(4):
            e(f"  v_lshlrev_b32 v{vTmp+2*d}, 16, v{vr+d}")
            e(f"  v_and_b32 v{vTmp+2*d+1}, s{sMask}, v{vr+d}")
        for d in range(4):
            e(f"  v_pk_fma_f32 v[{vAcc+2*d}:{vAcc+2*d+1}], v[{vTmp+2*d}:{vTmp+2*d+1}], v[{vPb}:{vPb+1}], v[{vAcc+2*d}:{vAcc+2*d+1}] op_sel:[0,{sel},0] op_sel_hi:[1,{sel},1]")
        d2 = ctl_post(kk)
        if epi == 2 and kk == 9:
            l = newlab()
            stt = vTmp
            e(f"  s_cmp_lg_u32 s{sIter}, 1\n  s_cbranch_scc1 {l}")
            allreduce(vL, "add", vT0)
            e(f"  s_lshl_b32 s3, s{sWave}, 3\n  v_mov_b32 v2, s3\n  s_mov_b64 exec, 1")
            e(f"  ds_write_b64 v2, v[{vM}:{vM+1}] offset:{S_BYTES+NW*512}")
            e(f"  s_mov_b64 exec, -1\n  v_mov_b32 v2, 0\n  s_waitcnt lgkmcnt(0)\n  s_barrier")
            e(f"  ds_read_b128 v[{stt}:{stt+3}], v2 offset:{S_BYTES+NW*512}")
            e(f"  ds_read_b128 v[{stt+4}:{stt+7}], v2 offset:{S_BYTES+NW*512+16}")
            e("  s_waitcnt lgkmcnt(0)")
            e(f"  v_max_f32 v{vT0}, v{stt}, v{stt+2}\n  v_max3_f32 v{vT0}, v{vT0}, v{stt+4}, v{stt+6}")
            e(f"  v_sub_f32 v{vM}, v{vM}, v{vT0}")
            for w in range(NW):
                e(f"  v_sub_f32 v{stt+2*w}, v{stt+2*w}, v{vT0}")
            e(f"  v_exp_f32 v{vM}, v{vM}")
            for w in range(NW):
                e(f"  v_exp_f32 v{stt+2*w}, v{stt+2*w}")
            e("  s_nop 0")
            e(f"  v_mul_f32 v{vL}, v{stt}, v{stt+1}")
            for w in range(1, NW):
                e(f"  v_fmac_f32 v{vL}, v{stt+2*w}, v{stt+2*w+1}")
            e(f"  v_rcp_f32 v{vL}, v{vL}\n  s_nop 0\n  v_mul_f32 v{vL}, v{vL}, v{vM}")
            e(f"  v_and_b32 v2, 15, v{vLane}\n  v_lshlrev_b32 v2, 5, v2\n  v_lshrrev_b32 v{vT0}, 4, v{vLane}\n  v_lshl_add_u32 v2, v{vT0}, 3, v2")
            e(f"  s_lshl_b32 s3, s{sWave}, 9\n  v_add_u32 v{vLds}, s3, v2\n  v_lshrrev_b32 v{vM}, 1, v2")
            e(f"{l}:")
            d2 = True
        if (d1 or d2) and kk < 15:
            setflags()
    e(f"  s_sub_u32 s{sIter}, s{sIter}, 1\n  s_cmp_lg_u32 s{sIter}, 0\n  s_cbranch_scc1 L_vloop")
    if stamps:
        e(f"  s_memrealtime s[{sSt+4}:{sSt+5}]")
    if epi == 2:
        e("  ; ---- sum the four key rows of the wave, scale by 2^(wave max - row max) / sum, add the waves, store")
        for i in range(4):
            e(f"  v_permlane32_swap_b32 v{vAcc+i}, v{vAcc+i+4}")
        e("  s_nop 0")
        for i in range(4):
            e(f"  v_add_f32 v{vAcc+i}, v{vAcc+i}, v{vAcc+i+4}")
        e("  s_nop 0")
        e(f"  v_permlane16_swap_b32 v{vAcc}, v{vAcc+2}\n  v_permlane16_swap_b32 v{vAcc+1}, v{vAcc+3}")
        e(f"  s_cmp_eq_u32 s{sWave}, 0")
        e(f"  v_add_f32 v{vAcc}, v{vAcc}, v{vAcc+2}\n  v_add_f32 v{vAcc+1}, v{vAcc+1}, v{vAcc+3}")
        e(f"  v_mul_f32 v{vAcc}, v{vAcc}, v{vL}\n  v_mul_f32 v{vAcc+1}, v{vAcc+1}, v{vL}")
        e("  s_cbranch_scc1 L_w0")
        e(f"  ds_write_b64 v{vLds}, v[{vAcc}:{vAcc+1}] offset:{S_BYTES}")
        e("  s_waitcnt lgkmcnt(0)\n  s_barrier\n  s_endpgm")
        e("L_w0:\n  s_barrier")
        for w in range(1, NW):
            e(f"  ds_read_b64 v[{vAcc+2*w}:{vAcc+2*w+1}], v2 offset:{S_BYTES+w*512}")
        e("  s_waitcnt lgkmcnt(1)")
        e(f"  v_pk_add_f32 v[{vAcc}:{vAcc+1}], v[{vAcc}:{vAcc+1}], v[{vAcc+2}:{vAcc+3}]")
        e(f"  v_pk_add_f32 v[{vAcc}:{vAcc+1}], v[{vAcc}:{vAcc+1}], v[{vAcc+4}:{vAcc+5}]")
        e("  s_waitcnt lgkmcnt(0)")
        e(f"  v_pk_add_f32 v[{vAcc}:{vAcc+1}], v[{vAcc}:{vAcc+1}], v[{vAcc+6}:{vAcc+7}]")
        e(f"  v_cvt_pk_bf16_f32 v{vAcc}, v{vAcc}, v{vAcc+1}")
        e(f"  buffer_store_dword v{vAcc}, v{vM}, s[{sO}:{sO+3}], 0 offen {outflags}")
    else:
        t = vTmp
        for i in range(4):
            e(f"  v_permlane32_swap_b32 v{vAcc+i}, v{vAcc+i+4}")
        e(f"  v_and_b32 v2, 15, v{vLane}\n  v_lshlrev_b32 v2, 5, v2\n  v_lshrrev_b32 v{t}, 4, v{vLane}\n  v_lshl_add_u32 v2, v{t}, 3, v2")
        for i in range(4):
            e(f"  v_add_f32 v{vAcc+i}, v{vAcc+i}, v{vAcc+i+4}")
        e(f"  s_lshl_b32 s3, s{sWave}, 9\n  v_add_u32 v2, s3, v2")
        e(f"  v_permlane16_swap_b32 v{vAcc}, v{vAcc+2}\n  v_permlane16_swap_b32 v{vAcc+1}, v{vAcc+3}")
        e("  s_nop 1")
        e(f"  v_add_f32 v{vAcc}, v{vAcc}, v{vAcc+2}\n  v_add_f32 v{vAcc+1}, v{vAcc+1}, v{vAcc+3}")
        e(f"  ds_write_b64 v2, v[{vAcc}:{vAcc+1}] offset:{S_BYTES}")
        allreduce(vL, "add", vT0)
        e(f"  s_lshl_b32 s3, s{sWave}, 3\n  v_mov_b32 v2, s3")
        e(f"  v_cmp_eq_u32 vcc, 0, v{vLane}\n  s_and_saveexec_b64 s[4:5], vcc")
        e(f"  ds_write_b64 v2, v[{vM}:{vM+1}] offset:{S_BYTES+NW*512}")
        e(f"  s_mov_b64 exec, s[4:5]")
        e("  s_waitcnt lgkmcnt(0)\n  s_barrier")
        e(f"  s_cmp_lg_u32 s{sWave}, 0\n  s_cbranch_scc1 L_end")
        stt = vTmp; dt = vAcc + 2
        dts = [18, 20, 22, 4]
        e(f"  v_mov_b32 v2, 0\n  v_lshlrev_b32 v{vT0}, 3, v{vLane}")
        for w in range(0, NW - 1, 2):
            e(f"  ds_read_b128 v[{stt+2*w}:{stt+2*w+3}], v2 offset:{S_BYTES+NW*512+w*8}")
        for w in range(NW):
            e(f"  ds_read_b64 v[{dts[w]}:{dts[w]+1}], v{vT0} offset:{S_BYTES+w*512}")
        e(f"  s_waitcnt lgkmcnt({NW})")
        e(f"  v_max_f32 v{vM}, v{stt}, v{stt+2}\n  v_max3_f32 v{vM}, v{vM}, v{stt+4}, v{stt+6}")
        for w in range(NW):
            e(f"  v_sub_f32 v{stt+2*w}, v{stt+2*w}, v{vM}")
        for w in range(NW):
            e(f"  v_exp_f32 v{stt+2*w}, v{stt+2*w}")
        e(f"  v_lshlrev_b32 v2, 2, v{vLane}")
        e(f"  v_mul_f32 v{vL}, v{stt}, v{stt+1}")
        for w in range(1, NW):
            e(f"  v_fmac_f32 v{vL}, v{stt+2*w}, v{stt+2*w+1}")
        e(f"  v_rcp_f32 v{vL}, v{vL}")
        e("  s_waitcnt lgkmcnt(0)")
        e(f"  v_mul_f32 v{vAcc}, v{stt}, v{dts[0]}\n  v_mul_f32 v{vAcc+1}, v{stt}, v{dts[0]+1}")
        for w in range(1, NW):
            e(f"  v_fmac_f32 v{vAcc}, v{stt+2*w}, v{dts[w]}\n  v_fmac_f32 v{vAcc+1}, v{stt+2*w}, v{dts[w]+1}")
        e(f"  v_mul_f32 v{vAcc}, v{vAcc}, v{vL}\n  v_mul_f32 v{vAcc+1}, v{vAcc+1}, v{vL}")
        e(f"  v_cvt_pk_bf16_f32 v{vAcc}, v{vAcc}, v{vAcc+1}")
        e(f"  buffer_store_dword v{vAcc}, v2, s[{sO}:{sO+3}], 0 offen {outflags}")

    if stamps:
        b = vR + 16
        e(f"  s_waitcnt vmcnt(0)\n  s_memrealtime s[{sSt+6}:{sSt+7}]")
        e("  s_getreg_b32 s66, hwreg(HW_REG_HW_ID)\n  s_getreg_b32 s67, hwreg(HW_REG_XCC_ID)")
        e("  s_lshl_b32 s3, s68, 6\n  s_add_u32 s64, s64, s3\n  s_addc_u32 s65, s65, 0\n  s_waitcnt lgkmcnt(0)")
        for i in range(8):
            e(f"  v_mov_b32 v{b+i}, s{sSt+i}")
        if trace:
            e(f"  s_mul_i32 s3, s68, 192\n  s_add_u32 s3, s3, 0x100000\n  v_lshl_add_u32 v2, v{vLane}, 2, s3\n  global_store_dword v2, v{vTr}, s[64:65]")
        e(f"  v_mov_b32 v{b+8}, s66\n  v_mov_b32 v{b+9}, s67\n  v_mov_b32 v2, 0")
        e(f"  v_cmp_eq_u32 vcc, 0, v{vLane}\n  s_and_saveexec_b64 s[4:5], vcc")
        e(f"  global_store_dwordx4 v2, v[{b}:{b+3}], s[64:65]\n  global_store_dwordx4 v2, v[{b+4}:{b+7}], s[64:65] offset:16\n  global_store_dwordx2 v2, v[{b+8}:{b+9}], s[64:65] offset:56")
    e("L_end:\n  s_endpgm")
    e('.section .rodata,"a"\n.p2align 6')
    e(f".amdhsa_kernel {NAME}_kernel\n  .amdhsa_next_free_vgpr {nv}\n  .amdhsa_next_free_sgpr {100 if cfgc else 80}\n  .amdhsa_accum_offset {(nv+3)//4*4}")
    e("  .amdhsa_group_segment_fixed_size 0\n  .amdhsa_kernarg_size 48\n  .amdhsa_user_sgpr_count 2\n  .amdhsa_user_sgpr_kernarg_segment_ptr 1\n  .amdhsa_system_sgpr_workgroup_id_x 1\n.end_amdhsa_kernel")
    return "\n".join(L) + "\n"

if __name__ == "__main__":
    kw = {}
    for a in sys.argv[2:]:
        k, v = a.split("=", 1)
        if v in ("True", "False"): v = v == "True"
        else:
            try: v = int(v, 0)
            except ValueError: v = v.replace("+", " ")
        kw[k] = v
    open(sys.argv[1], "w").write(gen(**kw))
```
